```python
import torch

def _softmax(x, axis=-1):
    return torch.softmax(x, dim=axis)
def _gelu(x):
    return torch.nn.functional.gelu(x, approximate="tanh")
def _silu(x):
    return torch.nn.functional.silu(x)
def _sigmoid(x):
    return torch.sigmoid(x)
def _layernorm(x, axis=-1, eps=1e-5):
    m = x.mean(dim=axis, keepdim=True)
    v = x.var(dim=axis, keepdim=True, unbiased=False)
    return (x - m) / torch.sqrt(v + eps)
def _scatter_add(tgt, idx, src, axis=0):
    return tgt.clone().index_add_(axis, idx, src)
def _segment_sum(src, seg, n):
    out = torch.zeros((n,) + src.shape[1:], dtype=src.dtype)
    return out.index_add_(0, seg, src)
def _pad(x, pw):
    flat = tuple(v for pair in reversed(pw) for v in pair)
    return torch.nn.functional.pad(x, flat)

kernel_name = 'sequential_preLN__ssm_conv_h3__glu_gated_swiglu__prompt'

def setup_inputs():

    _w = (lambda a: (lambda t: t.to(torch.bfloat16) if t.is_floating_point() else t)(torch.as_tensor(a)))
    def _A_setup():
        B, S, D = 1, 2048, 576
        ks = 4
        return {
            "q": _w((lambda *s: torch.randn(*s, dtype=torch.bfloat16) * 0.05)(B, S, D)),
            "k": _w((lambda *s: torch.randn(*s, dtype=torch.bfloat16) * 0.2)(B, S, D)),
            "v": _w((lambda *s: torch.randn(*s, dtype=torch.bfloat16) * 0.2)(B, S, D)),
            "shift_k": _w((lambda *s: torch.randn(*s, dtype=torch.bfloat16) * 0.2)(D, ks) * 0.5),
            "ssm_k": _w((lambda *s: torch.randn(*s, dtype=torch.bfloat16) * 0.4)(D, S) * (1.0 / S ** 0.5)),
            "ssm_D": _w((lambda *s: torch.randn(*s, dtype=torch.bfloat16) * 0.2)(D)),
        }
    _A_in = _A_setup()

    def _B_setup():
        B, S, D, F = 1, 2048, 576, 4608
        return {
            "x": _w((lambda *s: torch.randn(*s, dtype=torch.bfloat16) * 0.05)(B, S, D)),
            "w1": _w((lambda *s: torch.randn(*s, dtype=torch.bfloat16) * 0.2)(D, F) * (2.0 / D) ** 0.5),
            "w3": _w((lambda *s: torch.randn(*s, dtype=torch.bfloat16) * 0.2)(D, F) * (2.0 / D) ** 0.5),
            "w2": _w((lambda *s: torch.randn(*s, dtype=torch.bfloat16) * 0.2)(F, D) * (2.0 / F) ** 0.5),
        }
    _B_in = _B_setup()

    return {
        "A_q": _A_in["q"],
        "A_k": _A_in["k"],
        "A_v": _A_in["v"],
        "A_shift_k": _A_in["shift_k"],
        "A_ssm_k": _A_in["ssm_k"],
        "A_ssm_D": _A_in["ssm_D"],
        "B_x": _B_in["x"],
        "B_w1": _B_in["w1"],
        "B_w3": _B_in["w3"],
        "B_w2": _B_in["w2"],
    }

def reference(A_q, A_k, A_v, A_shift_k, A_ssm_k, A_ssm_D, B_x, B_w1, B_w3, B_w2):
    def _A_ref(q, k, v, shift_k, ssm_k, ssm_D):
        B, S, D = q.shape
        ks = shift_k.shape[-1]
        k_pad = _pad(k, ((0, 0), (ks - 1, 0), (0, 0)))
        k_shift = torch.zeros_like(k)
        for t in range(ks):
            k_shift = k_shift + k_pad[:, t:t + S, :] * shift_k[:, ks - 1 - t][None, None, :]
        kv = k_shift * v
        L = 2 * S
        kv_pad = _pad(kv, ((0, 0), (0, S), (0, 0)))
        kf_pad = _pad(ssm_k, ((0, 0), (0, S)))
        kv_f = (lambda x, axes=(-2,-1): torch.fft.rfft2(x.float(), dim=axes))(kv_pad[:, None, :, :], axes=(1, 2))
        kf_f = (lambda x, axes=(-2,-1): torch.fft.rfft2(x.float(), dim=axes))(kf_pad[:, None, :], axes=(1, 2))
        kf_f = (lambda x, *d: x.permute(*d))(kf_f, 1, 2, 0)
        y_f = kv_f * kf_f[None, :, :, :]
        y = (lambda x, s, axes=(-2,-1): torch.fft.irfft2(x, s=s, dim=axes).to(torch.bfloat16))(y_f, (1, L), axes=(1, 2))[:, 0, :S, :]
        y = y + kv * ssm_D[None, None, :]
        return q * y

    def _B_ref(x, w1, w3, w2):
        gate = torch.einsum("bsd,df->bsf", x, w1)
        up = torch.einsum("bsd,df->bsf", x, w3)
        h = _silu(gate) * up
        out = torch.einsum("bsf,fd->bsd", h, w2)
        return out

    x = A_q
    h = x + _A_ref(_layernorm(x, axis=-1), A_k, A_v, A_shift_k, A_ssm_k, A_ssm_D)
    h2 = h + _B_ref(_layernorm(h, axis=-1), B_w1, B_w3, B_w2)
    return h2
```

```python
import re

REG_RE = re.compile(r'^(-|\|)?(abs\()?(v|a|s)(\d+|\[(\d+):(\d+)\])\)?\|?$')


def regs_of(tok):
    tok = tok.strip()
    if tok in ('vcc', 'vcc_lo', 'vcc_hi'):
        return {'vcc'}
    if tok in ('exec', 'exec_lo', 'exec_hi'):
        return {'exec'}
    if tok == 'm0':
        return {'m0'}
    m = REG_RE.match(tok)
    if not m:
        return set()
    k = m.group(3)
    if m.group(5) is not None:
        return {f'{k}{i}' for i in range(int(m.group(5)), int(m.group(6)) + 1)}
    return {f'{k}{m.group(4)}'}


TRANS = ('v_exp_f32', 'v_log_f32', 'v_rcp_f32', 'v_rsq_f32', 'v_sqrt_f32', 'v_sin_f32', 'v_cos_f32')
RMW = ('v_fmac_f32', 'v_dot2c_f32_bf16', 'v_pk_fmac', 'v_writelane')


class Ins:
    __slots__ = ('text', 'op', 'rd', 'wr', 'cls', 'tag', 'passes', 'srcc', 'wide', 'dpp')

    def __init__(self, text, tag=None):
        self.text = text
        self.tag = tag
        t = text.split(';')[0].strip()
        parts = t.split(None, 1)
        op = parts[0]
        self.op = op
        rest = parts[1] if len(parts) > 1 else ''
        toks = [x.strip() for x in rest.split(',')] if rest else []
        mods = ''
        if toks:
            sp = toks[-1].split(None, 1)
            toks[-1] = sp[0]
            mods = sp[1] if len(sp) > 1 else ''
        R = [regs_of(x) for x in toks]
        rd, wr = set(), set()
        self.passes = 0
        self.srcc = set()
        self.wide = False
        self.dpp = ('_dpp' in op) or ('row_' in mods) or ('quad_perm' in mods) or ('wave_' in mods)
        base = op.replace('_e32', '').replace('_e64', '').replace('_dpp', '').replace('_sdwa', '')
        if op.startswith('v_mfma'):
            cls = 'mfma'
            wr = R[0]
            rd = R[1] | R[2] | R[3]
            self.srcc = R[3]
            self.passes = 8 if '32x32' in op else 4
        elif op.startswith('ds_read') or op.startswith('ds_bpermute') or op.startswith('ds_swizzle'):
            cls = 'lds'
            wr = R[0]
            for r in R[1:]:
                rd |= r
        elif op.startswith('ds_write') or op.startswith('ds_add'):
            cls = 'lds'
            for r in R:
                rd |= r
        elif op.startswith('buffer_load') or op.startswith('global_load'):
            cls = 'vm'
            if ' lds' in (' ' + mods) or op.startswith('global_load_lds'):
                for r in R:
                    rd |= r
                rd |= {'m0'}
                cls = 'vmlds'
            else:
                wr = R[0]
                for r in R[1:]:
                    rd |= r
        elif op.startswith('buffer_store') or op.startswith('global_store'):
            cls = 'vmst'
            for r in R:
                rd |= r
            self.wide = op.endswith('x4') or op.endswith('x3')
            self.srcc = R[0] if op.startswith('buffer_store') else R[1]
        elif op.startswith('buffer_atomic') or op.startswith('global_atomic'):
            cls = 'vm'
            for r in R:
                rd |= r
            if 'sc0' in mods:
                wr = R[0]
        elif op in ('buffer_wbl2', 'buffer_inv'):
            cls = 'vm'
        elif op.startswith('s_load') or op.startswith('s_memtime') or op.startswith('s_memrealtime'):
            cls = 'smem'
            wr = R[0]
            for r in R[1:]:
                rd |= r
        elif op.startswith('v_cmp'):
            cls = 'valu'
            wr = R[0]
            if op.startswith('v_cmpx'):
                wr = wr | {'exec'}
            for r in R[1:]:
                rd |= r
        elif base in ('v_swap_b32', 'v_permlane16_swap_b32', 'v_permlane32_swap_b32'):
            cls = 'valu'
            wr = R[0] | R[1]
            rd = R[0] | R[1]
        elif base in ('v_add_co_u32', 'v_sub_co_u32', 'v_addc_co_u32', 'v_subb_co_u32'):
            cls = 'valu'
            wr = R[0] | R[1]
            for r in R[2:]:
                rd |= r
        elif op.startswith('v_'):
            cls = 'valu'
            wr = R[0] if R else set()
            for r in R[1:]:
                rd |= r
            if base.startswith(RMW) or self.dpp or '_sdwa' in op:
                rd |= wr
            if base == 'v_cndmask_b32' and len(toks) == 3:
                rd |= {'vcc'}
        elif op.startswith('s_cmp') or op.startswith('s_bitcmp'):
            cls = 'salu'
            for r in R:
                rd |= r
        elif op in ('s_waitcnt', 's_barrier', 's_nop', 's_endpgm', 's_setprio', 's_sleep') or op.startswith('s_cbranch') or op == 's_branch':
            cls = 'ctl'
        elif op.startswith('s_'):
            cls = 'salu'
            wr = R[0] if R else set()
            for r in R[1:]:
                rd |= r
            if 'saveexec' in op:
                wr = wr | {'exec'}
                rd |= {'exec'}
            if op.startswith('s_addk') or op.startswith('s_mulk'):
                rd |= wr
        elif op.endswith(':'):
            cls = 'label'
        else:
            raise ValueError('unknown instruction ' + text)
        self.cls, self.rd, self.wr = cls, rd, wr


class Stream:
    def __init__(self, name=''):
        self.ins = []
        self.name = name

    def __call__(self, text, tag=None):
        for line in text.split('\n'):
            line = line.strip()
            if line and not line.startswith(';'):
                self.ins.append(Ins(line, tag))

    def raw(self, text):
        i = Ins('s_nop 0')
        i.cls = 'raw'
        i.text = text
        self.ins.append(i)

    def wait_tag(self, tag):
        i = Ins('s_nop 0')
        i.cls = 'waittag'
        i.tag = tag
        self.ins.append(i)

    def wait_regs(self, regs):
        i = Ins('s_nop 0')
        i.cls = 'waitregs'
        s = set()
        for r in regs:
            s |= regs_of(r)
        i.rd = s
        self.ins.append(i)

    def finalize(self):
        out = []
        vm = []
        lg = []
        smem = []
        hist = []
        self.n_wait = self.n_nop = 0

        def emit(i):
            out.append(i)
            st = 1
            if i.op == 's_nop':
                st = int(i.text.split()[1]) + 1
            hist.append((i, st))
            if len(hist) > 40:
                del hist[0]

        def do_wait(vmn, lgn):
            parts = []
            if vmn is not None:
                parts.append(f'vmcnt({vmn})')
                del vm[:len(vm) - vmn]
            if lgn is not None:
                parts.append(f'lgkmcnt({lgn})')
                if lgn == 0:
                    smem.clear()
                del lg[:len(lg) - lgn]
            emit(Ins('s_waitcnt ' + ' '.join(parts)))
            self.n_wait += 1

        def need_wait(touch_r, touch_w):
            t = touch_r | touch_w
            vmn = lgn = None
            for k in range(len(vm) - 1, -1, -1):
                if vm[k].wr & t:
                    vmn = len(vm) - 1 - k
                    break
            for k in range(len(lg) - 1, -1, -1):
                if lg[k].wr & t:
                    lgn = len(lg) - 1 - k
                    break
            if any(s.wr & t for s in smem):
                lgn = 0
            if lgn is not None and smem:
                lgn = 0
            if vmn is not None and vmn > 63:
                vmn = 63
            if lgn is not None and lgn > 15:
                lgn = 15
            return vmn, lgn

        def hazard(i):
            need = 0
            d = 0
            for p, st in reversed(hist):
                n = 0
                vgpr_w = {r for r in p.wr if r[0] in 'va' and r != 'vcc'}
                if p.cls == 'valu':
                    if i.cls == 'mfma' and vgpr_w & i.rd:
                        n = max(n, 2)
                    if p.op.replace('_e32', '').replace('_e64', '') in TRANS and i.cls == 'valu' and vgpr_w & i.rd:
                        n = max(n, 1)
                    sg = {r for r in p.wr if r[0] == 's' or r == 'vcc'}
                    if sg & i.rd:
                        if i.cls in ('vm', 'vmlds', 'vmst'):
                            n = max(n, 5)
                        elif i.cls == 'valu':
                            n = max(n, 4 if ('readlane' in i.op or 'writelane' in i.op) else 2)
                        elif i.cls in ('salu', 'smem'):
                            n = max(n, 2)
                    if vgpr_w & i.rd:
                        if 'readfirstlane' in i.op or 'readlane' in i.op:
                            n = max(n, 1)
                        if 'permlane' in i.op or i.dpp:
                            n = max(n, 2)
                        if ('sdwa' in p.op or 'op_sel' in p.text) and i.cls == 'valu':
                            n = max(n, 1)
                    if 'exec' in p.wr:
                        if i.cls == 'mfma' or 'permlane' in i.op or 'readlane' in i.op or 'readfirstlane' in i.op:
                            n = max(n, 4)
                        if i.dpp:
                            n = max(n, 5)
                elif p.cls == 'mfma':
                    big = {4: 8, 8: 12}[p.passes]
                    if i.cls == 'mfma':
                        ab = i.rd - i.srcc if not (i.srcc and i.srcc == p.wr and i.passes == p.passes) else (i.rd - i.srcc)
                        if p.wr & ab:
                            n = max(n, big)
                        if p.wr & i.srcc and not (i.srcc == p.wr and i.passes == p.passes):
                            n = max(n, big - 2)
                        if p.wr & i.wr and not (i.srcc == p.wr):
                            n = max(n, big)
                    else:
                        if p.wr & (i.rd | i.wr):
                            n = max(n, big)
                        if i.cls == 'valu' and p.srcc & i.wr:
                            n = max(n, {4: 3, 8: 7}[p.passes])
                elif p.cls == 'vmst':
                    if p.wide and p.srcc & i.wr:
                        n = max(n, 2)
                elif p.cls == 'salu':
                    if 'm0' in p.wr and i.cls == 'vmlds':
                        n = max(n, 1)
                need = max(need, n - d)
                d += st
                if d >= 20:
                    break
            return need

        for i in self.ins:
            if i.cls == 'raw':
                out.append(i)
                continue
            if i.cls == 'waittag':
                idx = [k for k, o in enumerate(vm) if o.tag == i.tag]
                if idx:
                    do_wait(min(len(vm) - 1 - idx[-1], 63), None)
                continue
            if i.cls == 'waitregs':
                vmn, lgn = need_wait(i.rd, set())
                if vmn is not None or lgn is not None:
                    do_wait(vmn, lgn)
                continue
            if i.op == 's_waitcnt':
                m = re.search(r'vmcnt\((\d+)\)', i.text)
                if m:
                    del vm[:max(0, len(vm) - int(m.group(1)))]
                m = re.search(r'lgkmcnt\((\d+)\)', i.text)
                if m:
                    n = int(m.group(1))
                    if n == 0:
                        smem.clear()
                    if not smem:
                        del lg[:max(0, len(lg) - n)]
                emit(i)
                continue
            if i.cls == 'label' or i.op.startswith('s_cbranch') or i.op == 's_branch':
                pend = [o.text for o in vm + lg + smem if o.wr]
                assert not pend or i.tag == 'nocheck', f'{self.name}: pending loads at control flow {i.text}: {pend[:3]}'
                if i.cls == 'label':
                    out.append(i)
                    continue
            vmn, lgn = need_wait(i.rd, i.wr)
            if vmn is not None or lgn is not None:
                do_wait(vmn, lgn)
            n = hazard(i)
            while n > 0:
                k = min(n, 16)
                emit(Ins(f's_nop {k - 1}'))
                self.n_nop += 1
                n -= k
            emit(i)
            if i.cls in ('vm', 'vmlds', 'vmst'):
                vm.append(i)
                assert len(vm) <= 63 or True
            elif i.cls == 'lds':
                lg.append(i)
            elif i.cls == 'smem':
                smem.append(i)
        self.out = out
        return '\n'.join(('' if o.cls == 'label' else '  ') + o.text for o in out)
```

```python
from asmlib import Stream, Ins
from gen import *

NS = 6
SLOT = 20480
CSL = NS * SLOT
FFN_LDS = CSL + 4096
LOG2E = 1.4426950408889634

vTMP, vTR, vF, vF2, vH, vHO, vCS = 0, 1, 7, 8, 9, 10, 11
vNM = [12, 14]
vC1 = [13, 15]
AFR = 16
CSB = 48
TMP = 64
SPILL = 80
ACCA = 96
sW, sP, sX, sT = 16, 17, 18, 19
W1, W3, WH, W2, HS, CS, HXO, HXP, PT, FL = 20, 24, 28, 32, 36, 40, 44, 48, 52, 56
sLW, sCF160, sCH160, sCF128 = 60, 61, 62, 63
sOA, sOH, sOB, sPA, sPH, sPB, sHN, sH4 = 64, 65, 66, 67, 68, 69, 70, 71
sT0, sT1, sT2 = 72, 73, 86
M1, M2, M3 = 74, 76, 78
sK = 80
sFO, sFP = 84, 85
sST = 88


def q(kind, r):
    return f'{kind}[{r}:{r+3}]'


def accA(up, T, n):
    return ('v', ACCA + ((T * 2 + n) * 2 + up) * 4)


def accB(up, T, n):
    i = (T * 2 + n) * 2 + up
    return ('a', 144 + 4 * i) if i < 28 else ('v', SPILL + 4 * (i - 28))


def hhA(s, n):
    return accA(0, 2 * s, n)[1]


_free = []
for _s in range(5):
    for _n in range(2):
        _free += [accA(1, 2 * _s, _n)[1], accA(0, 2 * _s + 1, _n)[1], accA(1, 2 * _s + 1, _n)[1]]


def hhB(s, n):
    return _free[s * 2 + n]


def hhP(s, n):
    return _free[8 + s * 2 + n]


def psel(dst, ev, od):
    return [f's_mul_i32 s{dst}, s{sP}, {od-ev}', f's_add_u32 s{dst}, s{dst}, {ev}']


def soff(idx):
    return ('0' if idx < 4 else f's{sK + idx // 4 - 1}'), (idx & 3) * 1024


def gen_ffn(P=None):
    P = dict(dict(D=5, G=2, HAHEAD=4, a_end=30, b_end=300, fA=40, pA=75, cA=105, fB=370, pB=405, cB=435), **(P or {}))
    ld, st = OPT['ldflag'], OPT['stflag']
    S = Stream('ffn')
    S('s_cmp_ge_u32 s2, 256')
    S('s_cbranch_scc1 ffn_end')
    S(f's_load_dwordx4 s[4:7], s[0:1], {A_W1}')
    S(f's_load_dwordx2 s[8:9], s[0:1], {A_W2}')
    S(f's_load_dwordx2 s[14:15], s[0:1], {A_WS}')
    if OPT['stamps']:
        S(f's_memtime s[{sST}:{sST+1}]')
    S('v_lshrrev_b32 v16, 6, v0')
    S('v_and_b32 v17, 63, v0')
    S(f'v_readfirstlane_b32 s{sW}, v16')
    S(f's_and_b32 s{sX}, s2, 7')
    S(f's_bfe_u32 s{sP}, s2, 0x10003')
    S(f's_lshr_b32 s{sT}, s2, 4')
    S(f's_lshl_b32 s{sLW}, s{sW}, 10')
    S('v_lshrrev_b32 v18, 3, v17')
    S('v_and_b32 v19, 7, v17')
    S('v_and_b32 v20, 6, v18')
    S('v_xor_b32 v19, v19, v20')
    S(f's_lshl_b32 s3, s{sW}, 3')
    S('v_add_u32 v18, s3, v18')
    S('v_mul_u32_u24 v18, 9216, v18')
    S(f'v_lshl_add_u32 v{vF}, v19, 4, v18')
    S(f'v_add_u32 v{vF2}, 128, v{vF}')
    S('v_lshrrev_b32 v18, 2, v17')
    S('v_and_b32 v19, 3, v17')
    S('v_bfe_u32 v20, v17, 4, 1')
    S('v_lshlrev_b32 v20, 1, v20')
    S('v_xor_b32 v21, v19, v20')
    S(f's_and_b32 s3, s{sW}, 1')
    S('s_lshl_b32 s3, s3, 4')
    S('v_add_u32 v22, s3, v18')
    S('v_mul_u32_u24 v22, 9216, v22')
    S(f'v_lshl_add_u32 v{vH}, v21, 4, v22')
    S('v_lshrrev_b32 v22, 4, v17')
    S('v_and_b32 v23, 15, v17')
    S(f's_lshl_b32 s3, s{sT}, 2')
    S(f's_add_u32 s3, s3, s{sW}')
    S('s_lshl_b32 s3, s3, 8')
    S('v_lshlrev_b32 v24, 14, v22')
    S('v_lshl_add_u32 v24, v23, 3, v24')
    S(f'v_add_u32 v{vHO}, s3, v24')
    S('s_waitcnt lgkmcnt(0)')
    srd(S, W1, 4, 0, NB_W)
    srd(S, W3, 6, 0, NB_W)
    srd(S, HS, 14, WS_H, NB_X)
    S(f's_cmp_lt_u32 s{sW}, 2')
    S(f's_cselect_b32 s{WH}, s4, s6')
    S(f's_cselect_b32 s{WH+1}, s5, s7')
    S(f's_mov_b32 s{WH+2}, {NB_W}')
    S(f's_mov_b32 s{WH+3}, 0x20000')
    S(f's_mul_i32 s3, s{sX}, 1152')
    for x in psel(sCF160, 256, 576 + 64) + psel(sCH160, 512, 576) + psel(sCF128, 0, 576 + 320):
        S(x)
    for r in (sCF160, sCH160, sCF128):
        S(f's_add_u32 s{r}, s{r}, s3')

    stages = []

    def dma(slot, ldsoff, vreg, srdn, so):
        return [f's_add_u32 m0, s{sLW}, {slot*SLOT+ldsoff}', f'buffer_load_dwordx4 v{vreg}, s[{srdn}:{srdn+3}], s{so} offen {ld} lds']

    def full_frags(ldsoff, tiles, mk):
        return [dict(a=vTR + t, off=ldsoff, d2=2048, mf=mk(T)) for t, T in enumerate(tiles)]

    def half_frags(ldsoff, tiles, mk):
        return [dict(a=vTR + 4 + t, off=ldsoff, d2=1024, mf=mk(T)) for t, T in enumerate(tiles)]

    def hreg(kk, n):
        return ('a', (kk * 2 + n) * 4)

    for kk in range(18):
        sl = len(stages) % NS
        d = [[f's_add_u32 s{sT0}, s{sCF160}, {kk*294912}'] + dma(sl, 0, vF, W1, sT0), dma(sl, 8192, vF, W3, sT0),
             dma(sl, 4096, vF2, W1, sT0), dma(sl, 12288, vF2, W3, sT0),
             [f's_add_u32 s{sT0}, s{sCH160}, {kk*294912}'] + dma(sl, 16384, vH, WH, sT0)]

        def mk(up):
            return lambda T: [(accA(up, T, n), hreg(kk, n), kk == 0, None) for n in range(2)]
        fr = (full_frags(0, range(0, 4), mk(0)) + full_frags(8192, range(0, 4), mk(1)) +
              full_frags(4096, range(4, 8), mk(0)) + full_frags(12288, range(4, 8), mk(1)) +
              half_frags(16384, (8, 9), mk(0)) + half_frags(18432, (8, 9), mk(1)))
        ex = []
        for n in range(2):
            hb = q(*hreg(kk, n))
            for gram in range(2):
                dq = q('v', CSB + 8 * n + 4 * gram)
                ex.append(f'v_mfma_f32_16x16x32_bf16 {dq}, {hb if gram else q("v", TMP)}, {hb}, {"0" if kk == 0 else dq}')
        stages.append(dict(dma=d, frags=fr, extra=ex, ph='A'))
    for kk in range(18):
        sl = len(stages) % NS
        d = [[f's_add_u32 s{sT0}, s{sCF128}, {kk*294912}'] + dma(sl, 0, vF, W1, sT0), dma(sl, 8192, vF, W3, sT0),
             dma(sl, 4096, vF2, W1, sT0), dma(sl, 12288, vF2, W3, sT0)]

        def mk(up):
            return lambda T: [(accB(up, T, n), hreg(kk, n), kk == 0, None) for n in range(2)]
        fr = (full_frags(0, range(0, 4), mk(0)) + full_frags(8192, range(0, 4), mk(1)) +
              full_frags(4096, range(4, 8), mk(0)) + full_frags(12288, range(4, 8), mk(1)))
        stages.append(dict(dma=d, frags=fr, extra=[], ph='B'))
    groups = []
    for i in range(2):
        groups.append(((sOA, 2 * i, lambda n, s=2 * i: hhA(s, n), f'hhA{2*i}'), (sOA, 2 * i + 1, lambda n, s=2 * i + 1: hhA(s, n), f'hhA{2*i+1}'), None))
    groups.append(((sOH, 0, lambda n: hhA(4, n), 'hhA4'), (sPH, 0, lambda n: hhP(4, n), 'hhP4'), sH4))
    for i in range(2):
        groups.append(((sPA, 2 * i, lambda n, s=2 * i: hhP(s, n), f'hhP{2*i}'), (sPA, 2 * i + 1, lambda n, s=2 * i + 1: hhP(s, n), f'hhP{2*i+1}'), None))
    for i in range(2):
        groups.append(((sOB, 2 * i, lambda n, s=2 * i: hhB(s, n), f'hhB{2*i}'), (sOB, 2 * i + 1, lambda n, s=2 * i + 1: hhB(s, n), f'hhB{2*i+1}'), None))
    for i in range(2):
        groups.append(((sPB, 2 * i, lambda n, s=5 + 2 * i: hhP(s, n), f'hhP{5+2*i}'), (sPB, 2 * i + 1, lambda n, s=6 + 2 * i: hhP(s, n), f'hhP{6+2*i}'), None))
    first2 = True
    for gi, (ka, kb, h4) in enumerate(groups):
        for which, k in enumerate((ka, kb)):
            sl = len(stages) % NS
            base, dk, breg, tok = k
            d = [[f's_add_u32 s{sT0}, s{base}, {dk*36864}'] + dma(sl, 0, vF, W2, sT0), dma(sl, 4096, vF2, W2, sT0),
                 [f's_add_u32 s{sT0}, s{sT0}, 256'] + dma(sl, 8192, vF, W2, sT0), dma(sl, 12288, vF2, W2, sT0)]

            def mk(breg, tok, first):
                return lambda T: [(('a', (T * 2 + n) * 4), ('v', breg(n)), first, f'{tok}_{n}') for n in range(2)]
            fr = []
            for L in range(4):
                fr += full_frags(4096 * L, range(4 * L, 4 * L + 4), mk(breg, tok, gi == 0 and which == 0))
            if which == 0:
                if h4 is None:
                    d.append([f's_add_u32 s{sT0}, s{base}, {dk*36864}', f's_add_u32 s{sT0}, s{sT0}, s{sHN}'] + dma(sl, 16384, vH, W2, sT0))
                else:
                    d.append(dma(sl, 16384, vH, W2, h4))
                fr += half_frags(16384, (16, 17), mk(breg, tok, gi == 0))
                fr += half_frags(18432, (16, 17), mk(kb[2], kb[3], False))
            if gi == 0 and which == 0:
                d[0] = [f'v_lshrrev_b32 v{vTMP}, 7, v{vHO}', f's_lshl_b32 s{sT0}, s{sW}, 3', f'v_add_u32 v{vTMP}, s{sT0}, v{vTMP}',
                        f'v_mul_u32_u24 v{vTMP}, 8064, v{vTMP}', f'v_sub_u32 v{vF}, v{vF}, v{vTMP}', f'v_sub_u32 v{vF2}, v{vF2}, v{vTMP}',
                        f'v_lshrrev_b32 v{vTMP}, 6, v{vHO}', f's_and_b32 s{sT0}, s{sW}, 1', f's_lshl_b32 s{sT0}, s{sT0}, 4',
                        f'v_add_u32 v{vTMP}, s{sT0}, v{vTMP}', f'v_mul_u32_u24 v{vTMP}, 8064, v{vTMP}', f'v_sub_u32 v{vH}, v{vH}, v{vTMP}'] + d[0]
            stages.append(dict(dma=d, frags=fr, extra=[], ph='C'))
    NSTG = len(stages)

    def hloads(kk):
        L = []
        for hh in range(2):
            grp = [f's_mov_b32 s{sT1}, {(8*kk+4*hh)*16384}']
            for n in range(2):
                r = (kk * 2 + n) * 4 + 2 * hh
                grp.append(f'buffer_load_dwordx2 a[{r}:{r+1}], v{vHO}, s[{HS}:{HS+3}], s{sT1} offen offset:{128*n}')
            L.append(grp)
        return L

    def emit_dma(k):
        for grp in stages[k]['dma']:
            for x in grp:
                S(x, f'dma{k}')
    for grp in hloads(0):
        for x in grp:
            S(x)
    emit_dma(0)
    srd(S, CS, 14, WS_CS, 2 * F_ * 4)
    S(f's_lshr_b32 s3, s{sW}, 1')
    S(f's_mul_i32 s3, s3, {F_*4}')
    S(f's_and_b32 s{sT0}, s{sW}, 1')
    S(f's_lshl_b32 s{sT0}, s{sT0}, 10')
    S(f's_add_u32 s3, s3, s{sT0}')
    S(f's_lshl_b32 s{sT0}, s{sX}, 1')
    S(f's_add_u32 s{sT0}, s{sT0}, s{sP}')
    S(f's_mul_i32 s{sT1}, s{sT0}, 1152')
    S(f's_add_u32 s3, s3, s{sT1}')
    S('v_lshlrev_b32 v24, 4, v17')
    S(f's_add_u32 m0, s{sLW}, {CSL}')
    S(f'buffer_load_dwordx4 v24, s[{CS}:{CS+3}], s3 offen lds', 'dma0')
    for k in range(1, NS - 2):
        for grp in hloads(k):
            for x in grp:
                S(x)
        emit_dma(k)
    assert P['HAHEAD'] == NS - 2
    srd(S, CS, 14, WS_RS, S_ * 4)
    S('s_and_b32 s3, s2, 15')
    S('s_cmp_eq_u32 s3, 0')
    S(f's_cselect_b32 s{CS+2}, {S_*4}, 0')
    srd(S, W2, 8, 0, NB_W)
    S('v_and_b32 v24, 6, v18')
    S('v_lshrrev_b32 v25, 1, v19')
    S('v_and_b32 v26, 1, v19')
    S('v_lshlrev_b32 v26, 3, v26')
    S('v_lshl_add_u32 v27, v18, 7, v26')
    for t in range(4):
        S(f'v_or_b32 v28, {2*t}, v25')
        S('v_xor_b32 v28, v28, v24')
        S(f'v_lshl_add_u32 v{vTR+t}, v28, 4, v27')
    S('v_lshl_add_u32 v27, v18, 6, v26')
    for t in range(2):
        S(f'v_or_b32 v28, {2*t}, v25')
        S('v_xor_b32 v28, v28, v20')
        S(f'v_lshl_add_u32 v{vTR+4+t}, v28, 4, v27')
    S(f'v_lshlrev_b32 v{vCS}, 4, v22')
    S(f'v_add_u32 v{vCS}, {CSL}, v{vCS}')
    for i in range(4):
        S(f'v_mov_b32 v{TMP+i}, 0x3f803f80')
    for i, mreg in enumerate((M1, M2, M3)):
        S(f'v_cmp_eq_u32 s[{mreg}:{mreg+1}], {i+1}, v19')
    for i in range(4):
        S(f's_mov_b32 s{sK+i}, {4096*(i+1)}')
    S(f's_mul_i32 s3, s{sX}, {576*1152}')
    ev = dict(A=128, H=256, B=0)
    od = dict(A=288 + 32, H=288, B=288 + 160)
    for reg, key, own in ((sOA, 'A', 1), (sOH, 'H', 1), (sOB, 'B', 1), (sPA, 'A', 0), (sPH, 'H', 0), (sPB, 'B', 0)):
        e = (ev if own else od)[key] * 1152
        o = (od if own else ev)[key] * 1152 + 640
        for x in psel(reg, e, o):
            S(x)
    for x in psel(sT1, 512, -64):
        S(x)
    for reg in (sOA, sOH, sOB, sPA, sPH, sPB):
        S(f's_add_u32 s{reg}, s{reg}, s3')
    S(f's_cmp_lt_u32 s{sW}, 2')
    S(f's_cselect_b32 s{sH4}, s{sOH}, s{sPH}')
    S(f's_cselect_b32 s{sHN}, 0, 36864')
    S(f's_add_u32 s{sH4}, s{sH4}, s{sT1}')
    S(f's_add_u32 s{sHN}, s{sHN}, s{sT1}')
    S('s_lshl_b32 s3, s2, 2')
    S(f's_add_u32 s3, s3, s{sW}')
    S(f's_lshl_b32 s{sFO}, s3, 6')
    S(f's_mul_i32 s{sT1}, s3, 18432')
    S(f's_add_u32 s{sT1}, s{sT1}, {WS_HHX}')
    srd(S, HXO, 14, f's{sT1}', 18432)
    S('s_xor_b32 s3, s3, 32')
    S(f's_lshl_b32 s{sFP}, s3, 6')
    S(f's_mul_i32 s{sT1}, s3, 18432')
    S(f's_add_u32 s{sT1}, s{sT1}, {WS_HHX}')
    srd(S, HXP, 14, f's{sT1}', 18432)
    S('s_lshr_b32 s3, s2, 3')
    S('s_lshl_b32 s3, s3, 2')
    S(f's_add_u32 s3, s3, s{sW}')
    S('s_mul_i32 s3, s3, 18432')
    S(f's_mul_i32 s{sT1}, s{sX}, {NB_X}')
    S(f's_add_u32 s3, s3, s{sT1}')
    S(f's_add_u32 s3, s3, {WS_PART}')
    srd(S, PT, 14, 's3', 18432)
    srd(S, FL, 14, WS_FLG, 65536)

    frags = []
    mf = []
    stage_pos = []
    for k, stg in enumerate(stages):
        stage_pos.append(len(mf))
        for j, f in enumerate(stg['frags']):
            f['stage'] = k
            f['first'] = j == 0
            fi = len(frags)
            frags.append(f)
            for n, (acc, B, first, tok) in enumerate(f['mf']):
                ar = AFR + 4 * (fi % 8)
                mf.append(dict(text=f'v_mfma_f32_16x16x32_bf16 {q(*acc)}, {q("v", ar)}, {q(*B)}, {"0" if first else q(*acc)}',
                               frag=fi, n=n, tok=tok))
        for x in stg['extra']:
            mf.append(dict(text=x, frag=None, n=0, tok=None))
    NM = len(mf)
    pB0, pC0 = stage_pos[18], stage_pos[36]
    side = []

    def add(target, ins, tag=None, provide=None):
        side.append((target, len(side), ins if isinstance(ins, list) else [ins], tag, provide))

    def spread(items, p0, p1):
        tot = sum(it[1] for it in items)
        acc = 0
        for ins, w, tag, prov in items:
            add(p0 + (p1 - p0) * acc / tot, ins, tag, prov)
            acc += w

    for kk in range(P['HAHEAD'], 18):
        p = stage_pos[kk - P['HAHEAD']]
        for i, grp in enumerate(hloads(kk)):
            add(p + 22 + 8 * i, grp)
    add(stage_pos[16], [f'v_mbcnt_lo_u32_b32 v{vHO}, -1, 0', f'v_mbcnt_hi_u32_b32 v{vHO}, -1, v{vHO}'])
    add(stage_pos[16] + 2, [f'v_lshlrev_b32 v{vHO}, 4, v{vHO}'])
    it = []

    def I(x, w=1, tag=None, prov=None, L=None):
        (it if L is None else L).append((x, w, tag, prov))
    t0 = TMP
    I(f'v_bfe_u32 v{t0}, v{vHO}, 4, 4')
    I(f'v_lshrrev_b32 v{t0+1}, 2, v{t0}')
    I(f'v_lshl_add_u32 v{t0+1}, v{t0+1}, 4, v{t0}')
    I(f'v_lshlrev_b32 v{t0+1}, 2, v{t0+1}')
    for n in range(2):
        gq = CSB + 8 * n + 4
        for i, mreg in enumerate((M1, M2, M3)):
            I(f'v_cndmask_b32 v{gq}, v{gq}, v{gq+i+1}, s[{mreg}:{mreg+1}]')
        I(f'ds_bpermute_b32 v{gq}, v{t0+1}, v{gq}')
    I(f's_lshl_b32 s{sT2}, s{sT}, 2')
    I(f's_add_u32 s{sT2}, s{sT2}, s{sW}')
    I(f's_lshl_b32 s{sT2}, s{sT2}, 7')
    I(f'v_lshlrev_b32 v{t0}, 2, v{t0}')
    for n in range(2):
        sq, gq, t = CSB + 8 * n, CSB + 8 * n + 4, t0 + 2 + 2 * n
        I(f'v_mul_f32 v{vNM[n]}, {-1.0/576!r}, v{sq}')
        I(f'v_mov_b32 v{t}, 0x3727c5ac')
        I(f'v_fmac_f32 v{t}, {1.0/576!r}, v{gq}')
        I(f'v_fma_f32 v{t}, -v{vNM[n]}, v{vNM[n]}, v{t}')
        I(f'v_max_f32 v{t}, 0x3727c5ac, v{t}')
        I(f'v_rsq_f32 v{t}, v{t}', 2)
        I(f'v_mul_f32 v{vC1[n]}, {-LOG2E!r}, v{t}')
        I(f'v_mul_f32 v{t}, v{t}, v{t}')
        I(f'buffer_store_dword v{t}, v{t0}, s[{CS}:{CS+3}], s{sT2} offen offset:{64*n} {st}')
    n_stat = len(it)

    def cs_read(buf, off):
        return [f'ds_read_b128 {q("v", CSB+8*buf)}, v{vCS} offset:{off}', f'ds_read_b128 {q("v", CSB+8*buf+4)}, v{vCS} offset:{off+2048}']

    def silu(L, accf, T, n, buf, dst, prov, store):
        (gk, g), (uk, u) = accf(0, T, n), accf(1, T, n)
        e = TMP + 8 + 4 * (n & 1)
        if gk == 'a':
            g2 = TMP
            for r in range(4):
                I(f'v_accvgpr_read_b32 v{g2+r}, a{g+r}', L=L)
            g = g2
        if uk == 'a':
            u2 = TMP + 4
            for r in range(4):
                I(f'v_accvgpr_read_b32 v{u2+r}, a{u+r}', L=L)
            u = u2
        for r in range(4):
            I(f'v_fmac_f32 v{g+r}, v{vNM[n]}, v{CSB+8*buf+r}', L=L)
        for r in range(4):
            I(f'v_mul_f32 v{e+r}, v{vC1[n]}, v{g+r}', L=L)
        for r in range(4):
            I(f'v_exp_f32 v{e+r}, v{e+r}', 2, L=L)
            I(f'v_fmac_f32 v{u+r}, v{vNM[n]}, v{CSB+8*buf+4+r}', L=L)
        for r in range(4):
            I(f'v_add_f32 v{e+r}, 1.0, v{e+r}', L=L)
        for r in range(4):
            I(f'v_rcp_f32 v{e+r}, v{e+r}', 2, L=L)
            I(f'v_mul_f32 v{u+r}, v{g+r}, v{u+r}', L=L)
        for r in range(4):
            I(f'v_mul_f32 v{u+r}, v{u+r}, v{e+r}', L=L)
        I(f'v_cvt_pk_bf16_f32 v{dst}, v{u}, v{u+1}', L=L)
        I(f'v_cvt_pk_bf16_f32 v{dst+1}, v{u+2}, v{u+3}', prov=prov, L=L)
        if store is not None:
            so, im = soff(store[0])
            I(f'buffer_store_dwordx4 {q("v", store[1])}, v{vHO}, s[{HXO}:{HXO+3}], {so} offen offset:{im} sc1', tag=store[2], L=L)

    for x in psel(sT2, 512, 128):
        I(x)
    I(f'v_add_u32 v{vCS}, s{sT2}, v{vCS}')
    for x in cs_read(0, 0):
        I(x)
    for T in range(10):
        if T == 7:
            for x in psel(sT2, 512, -128):
                I(x)
            I(f'v_add_u32 v{vCS}, s{sT2}, v{vCS}')
        if T < 9:
            for x in cs_read((T + 1) & 1, 64 * (T + 1) if T < 7 else 64 * (T - 7)):
                I(x)
        s = T // 2
        for n in range(2):
            silu(it, accA, T, n, T & 1, hhA(s, n) + 2 * (T & 1), f'hhA{s}_{n}' if T & 1 else None,
                 (s * 2 + n, hhA(s, n), 'hhA') if T & 1 else None)
    spread(it, pB0 + 12, pC0 - P['a_end'])
    itb = []
    for x in psel(sT2, -1024, 640):
        I(x, L=itb)
    I(f'v_add_u32 v{vCS}, s{sT2}, v{vCS}', L=itb)
    for x in cs_read(0, 0):
        I(x, L=itb)
    spread(itb, pC0 - 12, pC0 - 2)
    itb = []
    for T in range(8):
        if T < 7:
            for x in cs_read((T + 1) & 1, 64 * (T + 1)):
                I(x, L=itb)
        s = T // 2
        for n in range(2):
            silu(itb, accB, T, n, T & 1, hhB(s, n) + 2 * (T & 1), f'hhB{s}_{n}' if T & 1 else None,
                 ((5 + s) * 2 + n, hhB(s, n), 'hhB') if T & 1 else None)
    spread(itb, pC0 + 10, pC0 + P['b_end'])
    slow = []
    for nm_, off, pf, pp, pc, slots in (('A', 0, P['fA'], P['pA'], P['cA'], (4, 0, 1, 2, 3)), ('B', 4, P['fB'], P['pB'], P['cB'], (5, 6, 7, 8))):
        add(pC0 + pf, [('waittag', 'hh' + nm_), f'v_mov_b32 v{vTMP}, 1', f'buffer_store_dword v{vTMP}, off, s[{FL}:{FL+3}], s{sFO} offset:{off} sc1'])
        add(pC0 + pp, [f'buffer_load_dword v{vTMP}, off, s[{FL}:{FL+3}], s{sFP} offset:{off} sc1'])
        add(pC0 + pc, [f'v_readfirstlane_b32 s{sT2}, v{vTMP}', f's_cmp_lg_u32 s{sT2}, 0', ('raw', f's_cbranch_scc0 ffn_slow{nm_}\nffn_back{nm_}:')])
        slow.append(f"""ffn_slow{nm_}:
  s_mov_b32 s3, 0x40000
ffn_spin{nm_}:
  buffer_load_dword v{vTMP}, off, s[{FL}:{FL+3}], s{sFP} offset:{off} sc1
  s_waitcnt vmcnt(0)
  v_readfirstlane_b32 s{sT2}, v{vTMP}
  s_sub_u32 s3, s3, 1
  s_cbranch_scc1 ffn_back{nm_}
  s_nop 1
  s_cmp_lg_u32 s{sT2}, 0
  s_cbranch_scc0 ffn_spin{nm_}
  s_branch ffn_back{nm_}""")
        k = 0
        for s in slots:
            for n in range(2):
                so, im = soff(s * 2 + n)
                add(pC0 + pc + 1 + k, [f'buffer_load_dwordx4 {q("v", hhP(s, n))}, v{vHO}, s[{HXP}:{HXP+3}], {so} offen offset:{im} sc1'], provide=f'hhP{s}_{n}')
                k += 1
    last = stage_pos[-1]
    for Pp in [8] + list(range(8)):
        p = last + 2 if Pp == 8 else last + 4 * Pp + 10
        for n in range(2):
            t = CSB + 16 * n if True else 0
            ins = []
            for h in range(2):
                for r in range(4):
                    ins.append(f'v_accvgpr_read_b32 v{t+4*h+r}, a{((2*Pp+h)*2+n)*4+r}')
            o = t + 8 + 4 * (Pp & 1)
            for i in range(4):
                ins.append(f'v_cvt_pk_bf16_f32 v{o+i}, v{t+2*i}, v{t+2*i+1}')
            so, im = soff(n * 9 + Pp)
            ins.append(f'buffer_store_dwordx4 {q("v", o)}, v{vHO}, s[{PT}:{PT+3}], {so} offen offset:{im} {st}')
            for i, x in enumerate(ins):
                add(p + 2 * n + 2.0 * i / len(ins), x)
    if OPT['stamps']:
        for i, p in enumerate((0, pB0, pC0, pC0 + 144, pC0 + 360, pC0 + 504)):
            add(p, [f's_memtime s[{sST+2+2*i if i < 3 else 4+2*(i-3)}:{(sST+3+2*i) if i < 3 else 5+2*(i-3)}]'])

    side.sort(key=lambda x: (x[0], x[1]))
    provided = set()
    si = 0
    hi_state = {vTR + i: False for i in range(6)}
    D, G = P['D'], P['G']
    dmaq = []

    def emit_side(ins, tag, prov):
        for x in ins:
            if isinstance(x, tuple):
                if x[0] == 'waittag':
                    S.wait_tag(x[1])
                else:
                    S.raw(x[1])
            else:
                S(x, tag)
        if prov:
            provided.add(prov)

    def read(fi, h, pos):
        f = frags[fi]
        k = f['stage']
        if h == 0 and f['first']:
            S.wait_tag(f'dma{k}')
            S('s_barrier')
            kn = k + NS - 2
            if kn < NSTG:
                grps = stages[kn]['dma']
                for i, grp in enumerate(grps):
                    dmaq.append((pos + 1 + 4 * i, grp, f'dma{kn}'))
        sl = k % NS
        hi = sl >= 3
        if hi_state[f['a']] != hi:
            S(f'v_add_u32 v{f["a"]}, {61440 if hi else -61440}, v{f["a"]}')
            hi_state[f['a']] = hi
        r = AFR + 4 * (fi % 8) + 2 * h
        S(f'ds_read_b64_tr_b16 v[{r}:{r+1}], v{f["a"]} offset:{(sl % 3)*SLOT + f["off"] + h*f["d2"]}')

    for fi in range(D):
        read(fi, 0, 0)
        read(fi, 1, 0)
    for pos, m in enumerate(mf):
        fi = m['frag']
        if fi is not None and m['n'] == 0 and fi % G == 0:
            S.wait_regs([q('v', AFR + 4 * (x % 8)) for x in range(fi, min(fi + G, len(frags)))])
        if m['tok']:
            assert m['tok'] in provided, (pos, m)
        S(m['text'])
        if fi is not None and fi + D < len(frags):
            read(fi + D, m['n'], pos)
        while dmaq and dmaq[0][0] <= pos:
            _, grp, tag = dmaq.pop(0)
            emit_side(grp, tag, None)
        while si < len(side) and side[si][0] <= pos:
            emit_side(*side[si][2:])
            si += 1
    assert not dmaq
    while si < len(side):
        emit_side(*side[si][2:])
        si += 1
    if OPT['stamps']:
        S('s_waitcnt vmcnt(0)')
        S('s_memtime s[10:11]')
        S('s_memrealtime s[12:13]')
        S('s_waitcnt lgkmcnt(0)')
        srd(S, FL, 14, 0x5000000, 65536)
        order = [sST, sST + 2, sST + 4, sST + 6, 4, 6, 8, 10, 12]
        for i, r in enumerate(order):
            S(f'v_mov_b32 v{vTMP}, s{r}')
            S(f'buffer_store_dword v{vTMP}, off, s[{FL}:{FL+3}], s{sFO} offset:{4*i}')
    S('ffn_end:', 'nocheck')
    S('s_endpgm')
    body = S.finalize()
    print(f'ffn: {NM} mfma, {len(S.out)} instr, {S.n_wait} waits, {S.n_nop} nops; pB0={pB0} pC0={pC0}', file=sys.stderr)
    return kernel_text('ffn_kernel', [body] + slow, 512, 256), FFN_LDS
```

```python
import sys
from asmlib import Stream

NAME = 'sequential_preLN__ssm_conv_h3__glu_gated_swiglu__prompt'
S_, D_, F_ = 2048, 576, 4608
A_X, A_K, A_V, A_SH, A_SK, A_SD, A_W1, A_W3, A_W2, A_OUT, A_DBG, A_WS = 0, 8, 16, 24, 32, 40, 56, 64, 72, 80, 88, 96
NB_X = S_ * D_ * 2
NB_W = D_ * F_ * 2
WS_UR = 0x0
WS_XQ = 0x240000
WS_H = 0x6C0000
WS_CS = 0x900000
WS_RS = 0x910000
WS_FLG = 0x920000
WS_PART = 0x1000000
WS_HHX = 0x3000000

OPT = dict(ldflag='', stflag='sc1', stamps=False)


def srd(S, d, lo, off, nbytes):
    if isinstance(off, str) or off:
        S(f's_add_u32 s{d}, s{lo}, {off}')
        S(f's_addc_u32 s{d+1}, s{lo+1}, 0')
    else:
        S(f's_mov_b32 s{d}, s{lo}')
        S(f's_mov_b32 s{d+1}, s{lo+1}')
    S(f's_mov_b32 s{d+2}, {nbytes}')
    S(f's_mov_b32 s{d+3}, 0x20000')


def udiv(S, dst, src, c, tmp):
    S(f's_mov_b32 s{tmp}, {(1 << 32) // c + 1}')
    S(f's_mul_hi_u32 s{dst}, s{src}, s{tmp}')


def lo16(S, d, s):
    S(f'v_lshlrev_b32 v{d}, 16, v{s}')


def hi16(S, d, s):
    S(f'v_and_b32 v{d}, 0xffff0000, v{s}')


def xlane_sum(S, x, t, steps):
    for st in steps:
        if st == 8:
            S(f'v_add_f32_dpp v{x}, v{x}, v{x} row_ror:8 row_mask:0xf bank_mask:0xf')
        else:
            S(f'v_mov_b32 v{t}, v{x}')
            S(f'v_permlane{st}_swap_b32 v{t}, v{x}')
            S(f'v_add_f32 v{x}, v{x}, v{t}')


def kernel_text(name, parts, vgpr, accum, sgpr=96):
    body = '\n'.join(parts)
    return f""".text
.p2align 8
{name}:
{body}
.section .rodata,"a"
.p2align 6
.amdhsa_kernel {name}
  .amdhsa_next_free_vgpr {vgpr}
  .amdhsa_next_free_sgpr {sgpr}
  .amdhsa_accum_offset {accum}
  .amdhsa_group_segment_fixed_size 0
  .amdhsa_kernarg_size 104
  .amdhsa_user_sgpr_count 2
  .amdhsa_user_sgpr_kernarg_segment_ptr 1
  .amdhsa_system_sgpr_workgroup_id_x 1
  .amdhsa_float_denorm_mode_32 3
.end_amdhsa_kernel
"""


K1_NWG = 416


def gen_prep():
    ld, st = OPT['ldflag'], OPT['stflag']
    parts = []
    S = Stream('prep0')
    S(f's_cmp_ge_u32 s2, {K1_NWG}')
    S('s_cbranch_scc1 prep_end')
    S(f's_load_dwordx4 s[4:7], s[0:1], {A_X}')
    S(f's_load_dwordx4 s[8:11], s[0:1], {A_V}')
    S(f's_load_dwordx2 s[12:13], s[0:1], {A_SK}')
    S(f's_load_dwordx2 s[14:15], s[0:1], {A_WS}')
    S('v_lshrrev_b32 v2, 6, v0')
    S('v_and_b32 v1, 63, v0')
    S('v_readfirstlane_b32 s16, v2')
    S('s_waitcnt lgkmcnt(0)')
    S('s_cmp_ge_u32 s2, 352')
    S('s_cbranch_scc1 prep_pf')
    S('s_cmp_ge_u32 s2, 64')
    S('s_cbranch_scc1 prep_kv')
    parts.append(S.finalize())

    S = Stream('prep_ln')
    srd(S, 20, 4, 0, NB_X)
    srd(S, 24, 14, WS_XQ, 2 * NB_X)
    S('s_lshl_b32 s3, s2, 5')
    S('s_lshl_b32 s17, s16, 3')
    S('s_add_u32 s3, s3, s17')
    S('v_and_b32 v2, 7, v1')
    S('v_add_u32 v2, s3, v2')
    S('v_lshrrev_b32 v3, 3, v1')
    S('v_mul_u32_u24 v4, 1152, v2')
    S('v_lshl_add_u32 v4, v3, 3, v4')
    for i in range(18):
        S(f'buffer_load_dwordx2 v[{10+4*i}:{11+4*i}], v4, s[20:23], 0 offen offset:{64*i} {ld}')
    S('v_lshlrev_b32 v3, 15, v3')
    S('v_lshl_add_u32 v3, v2, 4, v3')
    F = 84
    for i in range(18):
        lo16(S, F + 4 * i, 10 + 4 * i)
        hi16(S, F + 4 * i + 1, 10 + 4 * i)
        lo16(S, F + 4 * i + 2, 11 + 4 * i)
        hi16(S, F + 4 * i + 3, 11 + 4 * i)
        if i == 0:
            continue
        if i == 1:
            S(f'v_pk_add_f32 v[4:5], v[{F}:{F+1}], v[{F+4}:{F+5}]')
            S(f'v_pk_add_f32 v[6:7], v[{F+2}:{F+3}], v[{F+6}:{F+7}]')
        else:
            S(f'v_pk_add_f32 v[4:5], v[4:5], v[{F+4*i}:{F+4*i+1}]')
            S(f'v_pk_add_f32 v[6:7], v[6:7], v[{F+4*i+2}:{F+4*i+3}]')
    S('v_pk_add_f32 v[4:5], v[4:5], v[6:7]')
    S('v_add_f32 v4, v4, v5')
    xlane_sum(S, 4, 5, (8, 16, 32))
    S(f'v_mul_f32 v4, {-1.0/576!r}, v4')
    S('v_mov_b32 v5, v4')
    for i in range(36):
        S(f'v_pk_add_f32 v[{F+2*i}:{F+2*i+1}], v[{F+2*i}:{F+2*i+1}], v[4:5]')
    S(f'v_pk_mul_f32 v[6:7], v[{F}:{F+1}], v[{F}:{F+1}]')
    S(f'v_pk_mul_f32 v[8:9], v[{F+2}:{F+3}], v[{F+2}:{F+3}]')
    for i in range(2, 36):
        a = 6 + 2 * (i & 1)
        S(f'v_pk_fma_f32 v[{a}:{a+1}], v[{F+2*i}:{F+2*i+1}], v[{F+2*i}:{F+2*i+1}], v[{a}:{a+1}]')
    S('v_pk_add_f32 v[6:7], v[6:7], v[8:9]')
    S('v_add_f32 v6, v6, v7')
    xlane_sum(S, 6, 7, (8, 16, 32))
    S('v_mov_b32 v7, 0x3727c5ac')
    S(f'v_fmac_f32 v7, {1.0/576!r}, v6')
    S('v_rsq_f32 v6, v7')
    S('v_mov_b32 v7, v6')
    for i in range(18):
        for h in range(2):
            r = F + 4 * i + 2 * h
            S(f'v_pk_mul_f32 v[{r}:{r+1}], v[{r}:{r+1}], v[6:7]')
            S(f'v_cvt_pk_bf16_f32 v{12+4*i+h}, v{r}, v{r+1}')
        S(f's_mov_b32 s3, {i*262144}')
        S(f'buffer_store_dwordx4 v[{10+4*i}:{13+4*i}], v3, s[24:27], s3 offen {st}')
    S('s_endpgm')
    parts.append(S.finalize())

    S = Stream('prep_kv')
    S('prep_kv:')
    srd(S, 20, 6, 0, NB_X)
    srd(S, 24, 8, 0, NB_X)
    srd(S, 28, 10, 0, D_ * 8)
    srd(S, 32, 14, WS_UR, NB_X)
    S('s_sub_u32 s3, s2, 64')
    udiv(S, 17, 3, 9, 18)
    S('s_mul_i32 s18, s17, 9')
    S('s_sub_u32 s18, s3, s18')
    S('s_lshl_b32 s18, s18, 6')
    S('s_lshl_b32 s19, s16, 4')
    S('s_add_u32 s18, s18, s19')
    S('s_lshl_b32 s17, s17, 6')
    S('v_and_b32 v2, 3, v1')
    S('v_lshl_add_u32 v2, v2, 2, s18')
    S('v_and_b32 v3, 60, v1')
    S('v_add_u32 v3, s17, v3')
    S('v_mul_u32_u24 v4, 1152, v3')
    S('v_lshl_add_u32 v4, v2, 1, v4')
    S('v_subrev_u32 v5, 3456, v4')
    S('v_lshlrev_b32 v6, 3, v2')
    for d in range(3):
        S(f'buffer_load_dwordx2 v[{10+2*d}:{11+2*d}], v5, s[20:23], 0 offen offset:{1152*d} {ld}')
    for d in range(4):
        S(f'buffer_load_dwordx2 v[{16+2*d}:{17+2*d}], v4, s[20:23], 0 offen offset:{1152*d} {ld}')
    S('buffer_load_dwordx4 v[32:35], v6, s[28:31], 0 offen')
    S('buffer_load_dwordx4 v[36:39], v6, s[28:31], 0 offen offset:16')
    for d in range(4):
        S(f'buffer_load_dwordx2 v[{24+2*d}:{25+2*d}], v4, s[24:27], 0 offen offset:{1152*d} {ld}')
    S('v_lshlrev_b32 v7, 12, v2')
    S('v_lshlrev_b32 v3, 1, v3')
    S('v_sub_u32 v7, v7, v3')
    S('v_add_u32 v7, 4088, v7')
    S('s_mov_b32 s36, 4096')
    S('s_mov_b32 s37, 8192')
    S('s_mov_b32 s38, 12288')
    for d in range(7):
        for h in range(2):
            lo16(S, 40 + 4 * d + 2 * h, 10 + 2 * d + h)
            hi16(S, 41 + 4 * d + 2 * h, 10 + 2 * d + h)
    for c in range(4):
        for h in range(2):
            lo16(S, 84 + 4 * (2 * h) + c, 32 + 2 * c + h)
            hi16(S, 84 + 4 * (2 * h + 1) + c, 32 + 2 * c + h)
    for i in range(4):
        for p in range(2):
            o = 100 + 4 * i + 2 * p
            for j in range(4):
                kf = 40 + 4 * (i + 3 - j) + 2 * p
                sh = 84 + 4 * j + 2 * p
                if j == 0:
                    S(f'v_pk_mul_f32 v[{o}:{o+1}], v[{kf}:{kf+1}], v[{sh}:{sh+1}]')
                else:
                    S(f'v_pk_fma_f32 v[{o}:{o+1}], v[{kf}:{kf+1}], v[{sh}:{sh+1}], v[{o}:{o+1}]')
    for i in range(4):
        for h in range(2):
            lo16(S, 68 + 4 * i + 2 * h, 24 + 2 * i + h)
            hi16(S, 69 + 4 * i + 2 * h, 24 + 2 * i + h)
            o = 100 + 4 * i + 2 * h
            S(f'v_pk_mul_f32 v[{o}:{o+1}], v[{o}:{o+1}], v[{68+4*i+2*h}:{69+4*i+2*h}]')
    for c in range(4):
        S(f'v_cvt_pk_bf16_f32 v{116+2*c}, v{112+c}, v{108+c}')
        S(f'v_cvt_pk_bf16_f32 v{117+2*c}, v{104+c}, v{100+c}')
        S(f'buffer_store_dwordx2 v[{116+2*c}:{117+2*c}], v7, s[32:35], {"0" if c == 0 else f"s{35+c}"} offen {st}')
    S('s_endpgm')
    parts.append(S.finalize())

    S = Stream('prep_pf')
    S('prep_pf:')
    S('s_sub_u32 s3, s2, 352')
    srd(S, 24, 14, WS_FLG, 65536)
    S('v_mov_b32 v8, 0')
    S('v_mov_b32 v9, 0')
    S('s_lshl_b32 s17, s3, 10')
    S('v_lshl_add_u32 v2, v0, 2, s17')
    S(f'buffer_store_dword v8, v2, s[24:27], 0 offen {st}')
    S('s_and_b32 s17, s3, 7')
    S('s_lshr_b32 s18, s3, 3')
    S('v_lshlrev_b32 v2, 4, v0')
    S('s_cmp_ge_u32 s18, 6')
    S('s_cbranch_scc1 prep_pfc')
    srd(S, 20, 12, 0, NB_X)
    S('s_mul_i32 s18, s18, 24')
    S('s_add_u32 s18, s18, s17')
    S('s_lshl_b32 s18, s18, 14')
    for i in range(12):
        S(f's_add_u32 s3, s18, {(i//4)*8*16384 + (i%4)*4096}')
        S(f'buffer_load_dwordx4 v[{10+4*i}:{13+4*i}], v2, s[20:23], s3 offen {ld}')
    S('s_waitcnt vmcnt(0)')
    S('s_endpgm')
    parts.append(S.finalize())
    S = Stream('prep_pfc')
    S('prep_pfc:')
    S('s_getpc_b64 s[20:21]')
    parts.append(S.finalize())
    parts.append('prep_pc:\n  s_add_u32 s20, s20, conv_kernel-prep_pc\n  s_addc_u32 s21, s21, 0\n'
                 '  s_mov_b32 s22, code_end-conv_kernel\n  s_mov_b32 s23, 0x20000')
    S = Stream('prep_pfc2')
    S('s_sub_u32 s18, s18, 6')
    S('s_mul_i32 s18, s18, 40960')
    for i in range(10):
        S(f's_add_u32 s3, s18, {i*4096}')
        S(f'buffer_load_dwordx4 v[{10+4*i}:{13+4*i}], v2, s[20:23], s3 offen')
    S('s_waitcnt vmcnt(0)')
    S('prep_end:')
    S('s_endpgm')
    parts.append(S.finalize())
    return kernel_text('prep_kernel', parts, 160, 160)


CV_CH = 12928
CV_Y = 4 * CV_CH
CV_LDS = CV_Y + 32768


def gen_conv():
    ld, st = OPT['ldflag'], OPT['stflag']
    parts = []
    S = Stream('conv0')
    S('s_cmp_ge_u32 s2, 256')
    S('s_cbranch_scc1 conv_end')
    S(f's_load_dwordx4 s[4:7], s[0:1], {A_SK}')
    S(f's_load_dwordx4 s[8:11], s[0:1], {A_W1}')
    S(f's_load_dwordx2 s[12:13], s[0:1], {A_W2}')
    S(f's_load_dwordx2 s[14:15], s[0:1], {A_WS}')
    S('v_lshrrev_b32 v2, 6, v0')
    S('v_and_b32 v1, 63, v0')
    S('v_readfirstlane_b32 s16, v2')
    S('s_waitcnt lgkmcnt(0)')
    S('s_cmp_ge_u32 s2, 144')
    S('s_cbranch_scc1 conv_pf')
    parts.append(S.finalize())

    S = Stream('conv')
    srd(S, 20, 14, WS_UR, NB_X)
    srd(S, 24, 4, 0, NB_X)
    srd(S, 28, 6, 0, D_ * 2)
    srd(S, 32, 14, WS_XQ, 2 * NB_X)
    srd(S, 36, 14, WS_H, NB_X)
    S('s_lshl_b32 s3, s2, 2')
    S('s_add_u32 s3, s3, s16')
    S('s_lshl_b32 s17, s3, 12')
    S(f's_mul_i32 s18, s16, {CV_CH}')
    S('v_lshlrev_b32 v2, 4, v1')
    S('v_add_u32 v3, 2, v2')
    S('s_mov_b32 m0, s18')
    for i in range(4):
        S(f'buffer_load_dwordx4 v2, s[20:23], s17 offen offset:{1024*i} lds', 'dma')
    S(f's_add_u32 m0, s18, {4608+32}')
    for i in range(4):
        S(f'buffer_load_dwordx4 v2, s[24:27], s17 offen offset:{1024*i} lds', 'dma')
    S(f's_add_u32 m0, s18, {4608+4160+32}')
    for i in range(4):
        S(f'buffer_load_dwordx4 v3, s[24:27], s17 offen offset:{1024*i} lds', 'dma')
    S('v_mov_b32 v4, 0')
    S('s_lshl_b32 s19, s3, 1')
    S('buffer_load_ushort v5, v4, s[24:27], s17 offen')
    S('buffer_load_ushort v6, v4, s[28:31], s19 offen')
    XQ = 180
    S('s_lshl_b32 s19, s2, 15')
    S('v_lshlrev_b32 v7, 5, v0')
    for it in range(4):
        S(f's_add_u32 s40, s19, {it*8192}')
        S(f'buffer_load_dwordx4 v[{XQ+8*it}:{XQ+8*it+3}], v7, s[32:35], s40 offen')
        S(f'buffer_load_dwordx4 v[{XQ+8*it+4}:{XQ+8*it+7}], v7, s[32:35], s40 offen offset:16')
    S('v_mov_b32 v8, 0')
    S('v_mov_b32 v9, 0')
    S('v_lshl_add_u32 v10, v1, 3, s18')
    S('ds_write_b64 v10, v[8:9] offset:4096')
    S('v_and_b32 v11, 15, v1')
    S('v_lshrrev_b32 v12, 4, v1')
    S('v_and_b32 v13, 1, v1')
    S('v_cmp_eq_u32 vcc, 1, v13')
    S('v_mov_b32 v13, 4160')
    S('v_cndmask_b32 v13, v13, 2, vcc')
    S('v_lshl_add_u32 v13, v11, 1, v13')
    S('v_lshl_add_u32 v13, v12, 4, v13')
    S(f's_add_u32 s40, s18, 4608')
    S('v_add_u32 v16, s40, v13')
    for qp in range(1, 4):
        S(f'v_add_u32 v{16+qp}, {1024*qp}, v16')
    S('v_lshlrev_b32 v13, 5, v11')
    S('v_sub_u32 v13, 480, v13')
    S('v_lshl_add_u32 v13, v12, 4, v13')
    S('v_add_u32 v15, s18, v13')
    S('v_and_b32 v13, 7, v1')
    S('v_lshlrev_b32 v13, 2, v13')
    S('v_bfe_u32 v14, v1, 3, 1')
    S('v_mul_u32_u24 v14, 4160, v14')
    S('v_add3_u32 v13, v13, v14, s40')
    S('v_lshlrev_b32 v5, 16, v5')
    S('v_cmp_eq_u32 vcc, 15, v11')
    S('v_cndmask_b32 v14, 0, v5, vcc')
    S('ds_write_b32 v13, v14')
    S('v_sub_u32 v13, 15, v11')
    S('v_and_b32 v14, 1, v13')
    S('v_lshlrev_b32 v14, 4, v14')
    S('v_lshlrev_b32 v6, v14, v6')
    S('v_lshrrev_b32 v13, 1, v13')
    S('v_lshlrev_b32 v14, 2, v12')
    S('v_sub_u32 v13, v13, v14')
    for dw in range(4):
        S(f'v_cmp_eq_u32 vcc, {dw}, v13')
        S(f'v_cndmask_b32 v{176+dw}, 0, v6, vcc')
    S('v_lshlrev_b32 v13, 6, v11')
    S('v_lshl_add_u32 v13, v12, 4, v13')
    S('s_lshl_b32 s40, s16, 13')
    S(f's_add_u32 s40, s40, {CV_Y}')
    S('v_add_u32 v12, s40, v13')
    S('v_lshlrev_b32 v13, 3, v0')
    S(f'v_add_u32 v13, {CV_Y}, v13')
    S('v_lshlrev_b32 v14, 4, v0')
    S.wait_tag('dma')
    S('s_waitcnt lgkmcnt(0)')
    ACC, AF, BF = 20, [52, 84], [116, 148 - 4]
    BF = [116, 212]

    def reads(r):
        a, b = AF[r & 1], BF[r & 1]
        L = []
        order = [('A', 0), ('B', 0)]
        for k in range(1, 8):
            order += [('B', k), ('A', k)]
        for kind, k in order:
            if kind == 'A':
                o = (k & 1) * 128 + 16 * r
                L.append(f'ds_read2_b32 v[{a+4*k}:{a+4*k+1}], v{16+(k>>1)} offset0:{o} offset1:{o+1}')
                L.append(f'ds_read2_b32 v[{a+4*k+2}:{a+4*k+3}], v{16+(k>>1)} offset0:{o+2} offset1:{o+3}')
            else:
                L.append(f'ds_read_b128 v[{b+4*k}:{b+4*k+3}], v15 offset:{512*(7-k)+64*r}')
        return L

    for x in reads(0):
        S(x)
    first = [True] * 8
    for r in range(8):
        a, b = AF[r & 1], BF[r & 1]
        pairs = sorted([(Q, m) for Q in range(8) for m in range(8) if Q + m <= 7], key=lambda p: (max(p), p[0] + p[1]))
        mf = []
        for Q, m in pairs:
            n = Q + m
            c = '0' if first[n] else f'v[{ACC+4*n}:{ACC+4*n+3}]'
            first[n] = False
            mf.append(f'v_mfma_f32_16x16x32_bf16 v[{ACC+4*n}:{ACC+4*n+3}], v[{a+4*Q}:{a+4*Q+3}], v[{b+4*m}:{b+4*m+3}], {c}')
        if r == 0:
            for n in range(8):
                mf.append(f'v_mfma_f32_16x16x32_bf16 v[{ACC+4*n}:{ACC+4*n+3}], v[176:179], v[{b+4*n}:{b+4*n+3}], v[{ACC+4*n}:{ACC+4*n+3}]')
        nxt = reads(r + 1) if r < 7 else []
        lag = 8 if r == 0 else 2
        for i, m in enumerate(mf):
            S(m)
            if i >= lag and nxt:
                S(nxt.pop(0))
        assert not nxt
    for n in range(8):
        S(f'ds_write_b128 v12, v[{ACC+4*n}:{ACC+4*n+3}] offset:{1024*n}')
    S('s_waitcnt lgkmcnt(0)')
    S('s_barrier')
    Y = 52
    for it in range(4):
        for c in range(4):
            S(f'ds_read_b64 v[{Y+8*it+2*c}:{Y+8*it+2*c+1}], v13 offset:{c*8192+2048*it}')
    S('s_lshl_b32 s19, s2, 14')
    T = 100
    for it in range(4):
        for tk in range(2):
            x = XQ + 8 * it + 4 * tk
            for h in range(2):
                lo16(S, T, x + h)
                hi16(S, T + 1, x + h)
                lo16(S, T + 2, x + 2 + h)
                hi16(S, T + 3, x + 2 + h)
                S(f'v_fmac_f32 v{T}, v{T+2}, v{Y+8*it+2*(2*h)+tk}')
                S(f'v_fmac_f32 v{T+1}, v{T+3}, v{Y+8*it+2*(2*h+1)+tk}')
                S(f'v_cvt_pk_bf16_f32 v{108+4*it+2*tk+h}, v{T}, v{T+1}')
        S(f's_add_u32 s40, s19, {it*4096}')
        S(f'buffer_store_dwordx4 v[{108+4*it}:{111+4*it}], v14, s[36:39], s40 offen {st}')
    S('s_endpgm')
    parts.append(S.finalize())

    S = Stream('conv_pf')
    S('conv_pf:')
    S('s_sub_u32 s3, s2, 144')
    S('s_and_b32 s17, s3, 7')
    S('s_lshr_b32 s18, s3, 3')
    S('s_cmp_ge_u32 s18, 9')
    S('s_cbranch_scc1 conv_pf2')
    srd(S, 20, 8, 0, NB_W)
    srd(S, 24, 10, 0, NB_W)
    srd(S, 28, 14, WS_CS, 2 * F_ * 4)
    S('s_mul_i32 s17, s17, 1152')
    S('s_lshl_b32 s18, s18, 7')
    S('s_add_u32 s17, s17, s18')
    S(f's_mul_i32 s18, s16, {144*9216}')
    S('s_add_u32 s18, s18, s17')
    S('v_lshrrev_b32 v2, 3, v1')
    S('v_mul_u32_u24 v2, 9216, v2')
    S('v_and_b32 v3, 7, v1')
    S('v_lshl_add_u32 v2, v3, 4, v2')
    for mtx in range(2):
        for i in range(18):
            r = 32 + 72 * mtx + 4 * i
            S(f's_add_u32 s3, s18, {i*8*9216}')
            S(f'buffer_load_dwordx4 v[{r}:{r+3}], v2, s[{20+4*mtx}:{23+4*mtx}], s3 offen {ld}')
    for mtx in range(2):
        acc = 8 + 8 * mtx
        for i in range(18):
            r = 32 + 72 * mtx + 4 * i
            for dw in range(4):
                if i == 0:
                    lo16(S, acc + 2 * dw, r + dw)
                    hi16(S, acc + 2 * dw + 1, r + dw)
                else:
                    t = 24 + 2 * dw
                    lo16(S, t, r + dw)
                    hi16(S, t + 1, r + dw)
                    S(f'v_pk_add_f32 v[{acc+2*dw}:{acc+2*dw+1}], v[{acc+2*dw}:{acc+2*dw+1}], v[{t}:{t+1}]')
    for e in range(16):
        xlane_sum(S, 8 + e, 24 + (e & 7), (8, 16, 32))
    S('s_lshl_b32 s3, s16, 9')
    S('v_lshl_add_u32 v4, v3, 5, s3')
    S('ds_write_b128 v4, v[8:11]')
    S('ds_write_b128 v4, v[12:15] offset:16')
    S('ds_write_b128 v4, v[16:19] offset:256')
    S('ds_write_b128 v4, v[20:23] offset:272')
    S('s_waitcnt lgkmcnt(0)')
    S('s_barrier')
    S('v_and_b32 v4, 127, v0')
    S('v_lshlrev_b32 v5, 2, v4')
    for w in range(4):
        S(f'ds_read_b32 v{8+w}, v5 offset:{512*w}')
    S('v_add_f32 v8, v8, v9')
    S('v_add_f32 v10, v10, v11')
    S('v_add_f32 v8, v8, v10')
    S('v_lshrrev_b32 v5, 6, v4')
    S(f'v_mul_u32_u24 v5, {F_*4}, v5')
    S('v_and_b32 v4, 63, v4')
    S('v_lshl_add_u32 v5, v4, 2, v5')
    S('s_lshl_b32 s17, s17, 1')
    S(f'buffer_store_dword v8, v5, s[28:31], s17 offen {st}')
    S('s_endpgm')
    parts.append(S.finalize())
    S = Stream('conv_pf2')
    S('conv_pf2:')
    srd(S, 20, 12, 0, NB_W)
    S('s_sub_u32 s18, s18, 9')
    S('s_mul_i32 s18, s18, 132096')
    S('s_mul_i32 s17, s17, 663552')
    S('s_add_u32 s18, s18, s17')
    S('v_lshlrev_b32 v2, 4, v0')
    for i in range(33):
        S(f's_add_u32 s3, s18, {i*4096}')
        S(f'buffer_load_dwordx4 v[{8+4*i}:{11+4*i}], v2, s[20:23], s3 offen {ld}')
    S('s_waitcnt vmcnt(0)')
    S('conv_end:')
    S('s_endpgm')
    parts.append(S.finalize())
    return kernel_text('conv_kernel', parts, 248, 248)


def gen_red():
    S = Stream('red')
    S('s_cmp_ge_u32 s2, 576')
    S('s_cbranch_scc1 red_end')
    S(f's_load_dwordx2 s[4:5], s[0:1], {A_OUT}')
    S(f's_load_dwordx2 s[14:15], s[0:1], {A_WS}')
    S('v_lshrrev_b32 v2, 6, v0')
    S('v_and_b32 v1, 63, v0')
    S('v_readfirstlane_b32 s16, v2')
    S('s_lshl_b32 s3, s2, 2')
    S('s_add_u32 s3, s3, s16')
    S('s_waitcnt lgkmcnt(0)')
    srd(S, 20, 14, WS_PART, 8 * NB_X)
    srd(S, 24, 14, WS_H, NB_X)
    srd(S, 28, 14, WS_RS, S_ * 4)
    srd(S, 32, 4, 0, NB_X)
    S('s_lshl_b32 s17, s3, 10')
    S('v_lshlrev_b32 v2, 4, v1')
    for p in range(8):
        S(f's_add_u32 s18, s17, {p*NB_X}')
        S(f'buffer_load_dwordx4 v[{16+4*p}:{19+4*p}], v2, s[20:23], s18 offen')
    udiv(S, 17, 3, 9, 18)
    S('s_mul_i32 s18, s17, 9')
    S('s_sub_u32 s18, s3, s18')
    S('s_lshr_b32 s19, s17, 4')
    S('s_lshl_b32 s19, s19, 3')
    S('s_and_b32 s36, s17, 7')
    S('s_add_u32 s19, s19, s36')
    S('s_lshl_b32 s19, s19, 4')
    S('s_bfe_u32 s36, s17, 0x10003')
    S('s_lshl_b32 s37, s18, 5')
    S('s_mul_i32 s38, s36, 320')
    S('s_add_u32 s37, s37, s38')
    S('s_lshl_b32 s38, s36, 5')
    S('s_add_u32 s38, s38, 256')
    S('s_cmp_lt_u32 s18, 8')
    S('s_cselect_b32 s37, s37, s38')
    S('v_and_b32 v3, 15, v1')
    S('v_add_u32 v3, s19, v3')
    S('v_lshrrev_b32 v4, 4, v1')
    S('v_lshlrev_b32 v5, 14, v4')
    S('v_lshl_add_u32 v5, v3, 3, v5')
    S('s_lshl_b32 s38, s37, 12')
    S('s_add_u32 s39, s38, 65536')
    S('buffer_load_dwordx2 v[8:9], v5, s[24:27], s38 offen')
    S('buffer_load_dwordx2 v[10:11], v5, s[24:27], s39 offen')
    S('v_lshlrev_b32 v6, 2, v3')
    S('buffer_load_dword v7, v6, s[28:31], 0 offen')
    S('v_mul_u32_u24 v3, 1152, v3')
    S('v_and_b32 v6, 1, v4')
    S('v_lshl_add_u32 v3, v6, 5, v3')
    S('v_lshrrev_b32 v6, 1, v4')
    S('v_lshl_add_u32 v3, v6, 4, v3')
    S('s_lshl_b32 s37, s37, 1')
    A = 48
    for p in range(8):
        for dw in range(4):
            if p == 0:
                lo16(S, A + 2 * dw, 16 + dw)
                hi16(S, A + 2 * dw + 1, 16 + dw)
            else:
                t = 56 + 2 * dw
                lo16(S, t, 16 + 4 * p + dw)
                hi16(S, t + 1, 16 + 4 * p + dw)
                S(f'v_pk_add_f32 v[{A+2*dw}:{A+2*dw+1}], v[{A+2*dw}:{A+2*dw+1}], v[{t}:{t+1}]')
    for dw in range(4):
        t = 56 + 2 * dw
        lo16(S, t, 8 + dw)
        hi16(S, t + 1, 8 + dw)
        S(f'v_fmac_f32 v{t}, v7, v{A+2*dw}')
        S(f'v_fmac_f32 v{t+1}, v7, v{A+2*dw+1}')
        S(f'v_cvt_pk_bf16_f32 v{12+dw}, v{t}, v{t+1}')
    S('v_permlane16_swap_b32 v12, v14')
    S('v_permlane16_swap_b32 v13, v15')
    S('buffer_store_dwordx4 v[12:15], v3, s[32:35], s37 offen')
    S('red_end:')
    S('s_endpgm')
    return kernel_text('red_kernel', [S.finalize()], 64, 64)


def unpack_hhx(t):
    import torch
    out = torch.zeros(2048, 4608)
    for wg in range(256):
        x, p, tile = wg & 7, (wg >> 3) & 1, wg >> 4
        fo = [128, 160, 192, 224, 256, 0, 32, 64, 96] if p == 0 else [32, 64, 96, 128, 0, 160, 192, 224, 256]
        for s in range(9):
            f0 = 288 * (2 * x + p) + fo[s]
            a = t[wg, :, s].reshape(4, 2, 4, 16, 2, 4)
            a = a.permute(0, 1, 3, 4, 2, 5).reshape(128, 32)
            out[128 * tile:128 * tile + 128, f0:f0 + 32] = a
    return out


def build(ffn_text, ffn_lds):
    head = f"""; H3 long-convolution block + SwiGLU FFN with pre-LayerNorm, four launches (generated by my gen.py)
; @launch kernel=prep_kernel grid=({K1_NWG},1,1) block=(256,1,1) lds=0
; @launch kernel=conv_kernel grid=(256,1,1) block=(256,1,1) lds={CV_LDS}
; @launch kernel=ffn_kernel grid=(256,1,1) block=(256,1,1) lds={ffn_lds}
; @launch kernel=red_kernel grid=(576,1,1) block=(256,1,1) lds=0
.amdgcn_target "amdgcn-amd-amdhsa--gfx950"
"""
    return head + gen_prep() + gen_conv() + ffn_text + gen_red() + '.text\ncode_end:\n  s_endpgm\n'


if __name__ == '__main__':
    from gen_ffn import gen_ffn
    txt, lds = gen_ffn()
    out = sys.argv[1] if len(sys.argv) > 1 else f'cdna_kernels/{NAME}.s'
    open(out, 'w').write(build(txt, lds))
    print('wrote', out)
```

```python
from asmlib import Stream, Ins
from gen import *

NCELL = 38
WSTR = NCELL * 1024 + 32
CSL = 4 * WSTR
FFN_LDS = CSL + 4096
LOG2E = 1.4426950408889634
BIAS = 4096
KROW = 32 * 9216
KROW2 = 32 * 1152

vTMP, vTF, vTH, vA, vB, vH, vHO, vCS = 0, 1, 2, 5, 6, 7, 8, 9
vNM = [10, 12]
vC1 = [11, 13]
AFR = 16
CSB = 48
TMP = 64
VQ0 = 80
sW, sP, sX, sT = 16, 17, 18, 19
W1, W3, WH, W2, W2B, HS, CS, HXO, HXP, PT, FL = 20, 24, 28, 32, 36, 40, 44, 48, 52, 56, 60
sLW, sFULL = 64, 65
sO, sPp, sOH, sPH, sHN, sH4 = 66, 67, 68, 69, 70, 71
sT0, sT1, sT2 = 72, 73, 86
M1, M2, M3 = 74, 76, 78
sK = 80
sFO, sFP = 84, 85
sST = 88


def q(kind, r):
    return f'{kind}[{r}:{r+3}]'


def psel(dst, ev, od):
    return [f's_mul_i32 s{dst}, s{sP}, {od-ev}', f's_add_u32 s{dst}, s{dst}, {ev}']


def soff(idx):
    return ('0' if idx < 4 else f's{sK + idx // 4 - 1}'), (idx & 3) * 1024


VQ = [('v', VQ0 + 4 * i) for i in range(44)]
AQ = [('a', 144 + 4 * i) for i in range(28)]
SLOTS = {0: (0, 1, 2, 3), 1: (8, 4, 5), 2: (6, 7)}
ACC, HH, HP = {}, {}, {}
_v, _a = list(VQ), list(AQ)


def _alloc(p, vpool):
    nt = 2 * len(SLOTS[p])
    for s in range(nt // 2):
        for n in range(2):
            ACC[(p, 0, 2 * s, n)] = vpool.pop(0)
            HH[(SLOTS[p][s], n)] = ACC[(p, 0, 2 * s, n)][1]
    free = []
    for T in range(nt):
        for n in range(2):
            for u in range(2):
                if (p, u, T, n) not in ACC:
                    ACC[(p, u, T, n)] = vpool.pop(0) if vpool else _a.pop(0)
                    if ACC[(p, u, T, n)][0] == 'v':
                        free.append(ACC[(p, u, T, n)])
    return free


_free0 = _alloc(0, _v)
STG = [x[1] for x in _v]
_free1 = _alloc(1, _v)
_free2 = _alloc(2, _free0)
for _s in (0, 1, 2, 3, 8, 4, 5, 6, 7):
    for _n in range(2):
        HP[(_s, _n)] = _a.pop(0) if _a else _free0.pop(0)


def gen_ffn(P=None):
    P = dict(dict(D=7, G=4, HA=5, la0=2, k1=3, e0=60, e1=90, e2=215, d1=45, d2=80, d3=40, dl=4, tail=8, erate=1.0), **(P or {}))
    st = OPT['stflag']
    S = Stream('ffn')
    S('s_cmp_ge_u32 s2, 256')
    S('s_cbranch_scc1 ffn_end')
    S(f's_load_dwordx4 s[4:7], s[0:1], {A_W1}')
    S(f's_load_dwordx2 s[14:15], s[0:1], {A_WS}')
    S(f's_load_dwordx2 s[8:9], s[0:1], {A_W2}')
    if OPT['stamps']:
        S(f's_memtime s[{sST}:{sST+1}]')
        S('s_mov_b32 s92, 0')
    S('v_lshrrev_b32 v16, 6, v0')
    S('v_and_b32 v17, 63, v0')
    S(f'v_readfirstlane_b32 s{sW}, v16')
    S(f's_and_b32 s{sX}, s2, 7')
    S(f's_bfe_u32 s{sP}, s2, 0x10003')
    S(f's_lshr_b32 s{sT}, s2, 4')
    S(f's_mul_i32 s{sLW}, s{sW}, {WSTR}')
    S('v_lshrrev_b32 v22, 4, v17')
    S('v_and_b32 v23, 15, v17')
    S(f's_lshl_b32 s3, s{sT}, 2')
    S(f's_add_u32 s3, s3, s{sW}')
    S('s_lshl_b32 s3, s3, 8')
    S('v_lshlrev_b32 v24, 14, v22')
    S('v_lshl_add_u32 v24, v23, 4, v24')
    S(f'v_add_u32 v{vHO}, s3, v24')
    S('v_bfe_u32 v18, v17, 3, 1')
    S('v_lshl_add_u32 v18, v22, 3, v18')
    S(f's_lshl_b32 s3, s{sW}, 1')
    S('v_add_u32 v18, s3, v18')
    S('v_and_b32 v19, 7, v17')
    S('v_lshlrev_b32 v19, 4, v19')
    S(f'v_add_u32 v19, {BIAS}, v19')
    S('v_mul_u32_u24 v20, 9216, v18')
    S(f'v_add_u32 v{vA}, v19, v20')
    S(f'v_add_u32 v{vB}, {128-2048}, v{vA}')
    S('v_and_b32 v19, 3, v17')
    S(f's_mul_i32 s{sFULL}, s{sX}, 1152')
    S(f's_mul_i32 s3, s{sP}, {576+64}')
    S(f's_add_u32 s{sFULL}, s{sFULL}, s3')
    S('s_waitcnt lgkmcnt(0)')
    srd(S, HS, 14, WS_H, NB_X)

    def wsrd(X, d, lo, off, nb):
        X(f's_sub_u32 s{d}, s{lo}, {off}')
        X(f's_subb_u32 s{d+1}, s{lo+1}, 0')
        X(f's_mov_b32 s{d+2}, {nb+off}')
        X(f's_mov_b32 s{d+3}, 0x20000')

    groups, stages = [], []
    cell = [0]

    def ld(v, srdn, so, t):
        return f'buffer_load_dwordx4 v{v}, s[{srdn}:{srdn+3}], s{so} offen offset:{1024*t} lds'

    def group(pre, loads):
        if cell[0] + len(loads) > NCELL:
            cell[0] = 0
        c = cell[0]
        cell[0] += len(loads)
        ins = [[x] for x in pre] + [[f's_add_u32 m0, s{sLW}, {c*1024}']] + [[ld(v, r, so, t)] for t, (v, r, so) in enumerate(loads)]
        groups.append(dict(ins=ins, cells=range(c, c + len(loads)), stage=len(stages)))
        return c

    def ffr(c, tiles, mk):
        return [dict(a=vTF, off=1024 * c + 32 * i, mf=mk(T)) for i, T in enumerate(tiles)]

    def hfr(c, upper, tiles, mk):
        return [dict(a=vTH + upper, off=1024 * c + 32 * i, mf=mk(T)) for i, T in enumerate(tiles)]

    def hreg(kk, n):
        return ('a', (kk * 2 + n) * 4)

    def mk1(p, up, kk):
        return lambda T: [(ACC[(p, up, T, n)], hreg(kk, n), kk == 0, f'h{kk}' if p == 0 else None) for n in range(2)]

    def stats(kk):
        ex = []
        for n in range(2):
            hb = q(*hreg(kk, n))
            for gram in range(2):
                dq = q('v', CSB + 8 * n + 4 * gram)
                ex.append(f'v_mfma_f32_16x16x32_bf16 {dq}, {hb if gram else q("v", TMP)}, {hb}, {"0" if kk == 0 else dq}')
        return ex

    def so1(c):
        return f's_add_u32 s{sT0}, s{sFULL}, {c}'
    fr = []
    for kk in range(18):
        c = group([so1(kk * KROW)], [(vA, W1, sT0), (vA, W3, sT0), (vB, W1, sT0), (vB, W3, sT0)])
        fr += (ffr(c, range(4), mk1(0, 0, kk)) + ffr(c + 1, range(4), mk1(0, 1, kk)) +
               ffr(c + 2, range(4, 8), mk1(0, 0, kk)) + ffr(c + 3, range(4, 8), mk1(0, 1, kk)))
        ex = stats(kk)
        for i in range(4):
            fr[-1 - 4 * i]['extra'] = [ex[i]]
        if kk % 2 == 1 or kk == 0:
            stages.append(fr)
            fr = []
    n_st0 = len(stages)
    for kk in range(18):
        c = group([so1(kk * KROW + 256)], [(vA, W1, sT0), (vA, W3, sT0), (vH, WH, sT0)])
        fr += (ffr(c, range(2, 6), mk1(1, 0, kk)) + ffr(c + 1, range(2, 6), mk1(1, 1, kk)) +
               hfr(c + 2, 0, (0, 1), mk1(1, 0, kk)) + hfr(c + 2, 1, (0, 1), mk1(1, 1, kk)))
        if kk % P['k1'] == P['k1'] - 1:
            stages.append(fr)
            fr = []
    n_st1 = len(stages)
    for kk in range(0, 18, 2):
        c = group(([f'v_add_u32 v{vB}, {KROW-2048}, v{vA}'] if kk == 0 else []) + [so1(kk * KROW + 384)],
                  [(vA, W1, sT0), (vA, W3, sT0), (vB, W1, sT0), (vB, W3, sT0)])
        fr += (ffr(c, range(4), mk1(2, 0, kk)) + ffr(c + 1, range(4), mk1(2, 1, kk)) +
               ffr(c + 2, range(4), mk1(2, 0, kk + 1)) + ffr(c + 3, range(4), mk1(2, 1, kk + 1)))
        if kk % 4 == 2 or kk == 16:
            stages.append(fr)
            fr = []
    n_st2 = len(stages)

    def own(s):
        return (sO, s, lambda n: ('v', HH[(s, n)]), f'hh{s}') if s < 8 else (sOH, 0, lambda n: ('v', HH[(8, n)]), 'hh8')

    def par(s):
        return (sPp, s, lambda n: HP[(s, n)], f'hp{s}') if s < 8 else (sPH, 0, lambda n: HP[(8, n)], 'hp8')

    started = set()

    def mk2(k):
        def f(T):
            r = [(('a', (T * 2 + n) * 4), k[2](n), T not in started, f'{k[3]}_{n}') for n in range(2)]
            started.add(T)
            return r
        return f

    def hp_group(ka, h4):
        pre = [f's_add_u32 s{sT1}, s{ka[0]}, {ka[1]*KROW2}', f's_add_u32 s{sT1}, s{sT1}, s{sHN}'] if h4 is None else []
        return group(pre, [(vH, W2, sT1 if h4 is None else h4)])

    pairs = [(own(0), own(1), None), (own(2), own(3), None), (par(0), par(1), None), (par(2), par(3), None), (own(8), par(8), sH4),
             (own(4), own(5), None), (par(4), par(5), None), (own(6), own(7), None), (par(6), par(7), None)]
    ntail = P['tail'] // 2
    for gi, (ka, kb, h4) in enumerate(pairs[:9 - ntail]):
        fr = []
        for which, k in enumerate((ka, kb)):
            pre = [f'v_mov_b32 v{vA}, v14', f'v_mov_b32 v{vH}, v15', f'v_add_u32 v{vB}, {128-1024}, v14'] if gi == 0 and which == 0 else []
            c = group(pre + [f's_add_u32 s{sT0}, s{k[0]}, {k[1]*KROW2}'], [(vA, W2, sT0), (vB, W2, sT0), (vA, W2B, sT0), (vB, W2B, sT0)])
            for L in range(4):
                fr += ffr(c + L, range(4 * L, 4 * L + 4), mk2(k))
        c = hp_group(ka, h4)
        fr += hfr(c, 0, (16, 17), mk2(ka)) + hfr(c, 1, (16, 17), mk2(kb))
        if ntail == 0 and gi == 8:
            for Pp in range(8):
                fr[16 + 2 * Pp + 1]['fin'] = Pp
            fr[-1]['fin'] = 8
        stages.append(fr)
    if ntail:
        tp = pairs[9 - ntail:]
        assert all(x[2] is None for x in tp)
        seq = [(0, i) for i in range(ntail - 1)] + [('h', i) for i in range(ntail - 1)] + [(0, ntail - 1), ('h', ntail - 1)]
        seq += [(L, i) for L in range(1, 4) for i in range(ntail)]
        fr, cnt = [], 0
        for j, (L, i) in enumerate(seq):
            ka, kb, h4 = tp[i]
            if L == 'h':
                c = hp_group(ka, h4)
                fr += hfr(c, 0, (16, 17), mk2(ka)) + hfr(c, 1, (16, 17), mk2(kb))
                if i == ntail - 1:
                    fr[-1]['fin'] = 8
                cnt += 1
            else:
                pre = [f'v_add_u32 v{vB}, {KROW2-1024}, v{vA}'] if j == 0 else []
                c = group(pre + [f's_add_u32 s{sT0}, s{ka[0]}, {ka[1]*KROW2+128*L}'], [(vA, W2, sT0), (vB, W2, sT0)])
                a, b = ffr(c, range(4 * L, 4 * L + 4), mk2(ka)), ffr(c + 1, range(4 * L, 4 * L + 4), mk2(kb))
                if i == ntail - 1:
                    fr += [a[0], a[1], b[0], b[1], a[2], a[3], b[2], b[3]]
                    fr[-5]['fin'] = 2 * L
                    fr[-1]['fin'] = 2 * L + 1
                else:
                    fr += a + b
                cnt += 2
            if cnt >= 8:
                stages.append(fr)
                fr, cnt = [], 0
        if fr:
            stages.append(fr)
    NSTG = len(stages)

    def hload(kk):
        L = []
        for hh in range(2):
            r = STG[(2 * kk + hh) % len(STG)]
            L.append([f's_mov_b32 s{sT1}, {(8*kk+4*hh)*16384}', f'buffer_load_dwordx4 {q("v", r)}, v{vHO}, s[{HS}:{HS+3}], s{sT1} offen'])
        return L

    def hmove(kk):
        L = []
        for hh in range(2):
            r = STG[(2 * kk + hh) % len(STG)]
            for n in range(2):
                for i in range(2):
                    L.append(f'v_accvgpr_write_b32 a{(kk*2+n)*4+2*hh+i}, v{r+2*n+i}')
        return L

    def emit_groups(grps, tag=None):
        for grp in grps:
            for x in grp:
                S(x, tag)
    emit_groups(hload(0))
    wsrd(S, W1, 4, BIAS, NB_W)
    wsrd(S, W3, 6, BIAS + 1024, NB_W)
    emit_groups(groups[0]['ins'], 'dma0')
    emit_groups(hload(1))
    emit_groups(groups[1]['ins'], 'dma1')
    emit_groups(hload(2))
    emit_groups(hload(3))
    HPRE = 4
    S('v_bfe_u32 v20, v17, 3, 2')
    S(f'v_mul_u32_u24 v20, {WSTR}, v20')
    S('v_lshrrev_b32 v21, 5, v17')
    S('v_lshlrev_b32 v21, 8, v21')
    S('v_lshl_add_u32 v21, v19, 3, v21')
    S('v_add_u32 v20, v20, v21')
    S('v_bfe_u32 v27, v17, 2, 1')
    S(f'v_lshl_add_u32 v{vTF}, v27, 7, v20')
    for i in range(4):
        S(f'v_mov_b32 v{TMP+i}, 0x3f803f80')
    S(f'v_mov_b32 v{TMP+4}, v17')
    S(f'v_mov_b32 v{TMP+5}, v18')
    S(f'v_mov_b32 v{TMP+6}, v21')
    for x in hmove(0):
        S(x)

    it = []
    rel = [0]

    def I(x, w=None, tag=None, prov=None):
        x = x if isinstance(x, list) else [x]
        it.append(dict(ins=x, w=w or len(x), tag=tag, prov=prov, rel=rel[0], dl=None))

    def Isrd(d, lo, off, nb, sub=False):
        U = Stream()
        (wsrd if sub else srd)(U, d, lo, off, nb)
        t = [x.text for x in U.ins]
        I(t[:2])
        I(t[2])
        I(t[3])
    ln, t1 = TMP + 4, TMP + 7
    Isrd(CS, 14, WS_CS, 2 * F_ * 4)
    I(f's_lshr_b32 s10, s{sW}, 1')
    I(f's_mul_i32 s10, s10, {F_*4}')
    I(f's_and_b32 s11, s{sW}, 1')
    I('s_lshl_b32 s11, s11, 10')
    I('s_add_u32 s10, s10, s11')
    I(f's_lshl_b32 s11, s{sX}, 1')
    I(f's_add_u32 s11, s11, s{sP}')
    I('s_mul_i32 s11, s11, 1152')
    I('s_add_u32 s10, s10, s11')
    I(f'v_lshlrev_b32 v{TMP+8}, 4, v{ln}')
    I(f's_lshl_b32 s11, s{sW}, 10', prov='csready')
    groups[12]['ins'] += [[('require', 'csready'), f's_add_u32 m0, s11, {CSL}'], [f'buffer_load_dwordx4 v{TMP+8}, s[{CS}:{CS+3}], s10 offen lds']]
    I(f'v_mul_u32_u24 v{t1}, 8064, v{TMP+5}')
    I(f'v_sub_u32 v14, v{vA}, v{t1}')
    I(f'v_bfe_u32 v{t1}, v{ln}, 4, 1')
    I(f'v_mul_u32_u24 v{t1}, {WSTR}, v{t1}')
    I(f'v_add_u32 v{t1}, v{t1}, v{TMP+6}')
    I(f'v_bfe_u32 v{vTH}, v{ln}, 2, 2')
    I(f'v_lshl_add_u32 v{vTH}, v{vTH}, 6, v{t1}')
    I(f'v_add_u32 v{vTH+1}, {2*WSTR}, v{vTH}')
    I(f'v_bfe_u32 v{t1}, v{ln}, 2, 2')
    I(f'v_lshrrev_b32 v{TMP+6}, 4, v{ln}')
    I(f'v_lshl_add_u32 v{t1}, v{TMP+6}, 3, v{t1}')
    I(f's_and_b32 s3, s{sW}, 1')
    I('s_lshl_b32 s3, s3, 2')
    I(f'v_add_u32 v{TMP+6}, s3, v{t1}')
    I(f'v_and_b32 v{t1}, 3, v{ln}')
    I(f'v_mul_u32_u24 v{vH}, 9216, v{TMP+6}')
    I(f'v_lshl_add_u32 v{vH}, v{t1}, 4, v{vH}')
    for x in psel(3, BIAS + 512 - 256 - 2048, BIAS - 64 - 256 - 2048):
        I(x)
    I(f'v_add_u32 v{vH}, s3, v{vH}')
    I(f'v_mul_u32_u24 v15, 1152, v{TMP+6}')
    I(f'v_lshl_add_u32 v15, v{t1}, 4, v15')
    I(f'v_add_u32 v15, {BIAS}, v15')
    I([f's_cmp_lt_u32 s{sW}, 2', f's_cselect_b32 s{WH}, s4, s6', f's_cselect_b32 s{WH+1}, s5, s7'])
    Isrd(WH, WH, BIAS, NB_W, True)
    it[-1]['prov'] = 'halfready'
    groups[18]['ins'][0] = [('require', 'halfready')] + groups[18]['ins'][0]
    for i, mreg in enumerate((M1, M2, M3)):
        I(f'v_cmp_eq_u32 s[{mreg}:{mreg+1}], {i+1}, v{t1}')
    I(f'v_lshrrev_b32 v{t1}, 4, v{ln}')
    I(f'v_lshlrev_b32 v{vCS}, 4, v{t1}')
    for x in psel(3, CSL, CSL + 128):
        I(x)
    I(f'v_add_u32 v{vCS}, s3, v{vCS}')
    Isrd(W2, 8, BIAS, NB_W, True)
    Isrd(W2B, 8, BIAS + 2048 - 256, NB_W, True)
    for i in range(4):
        I(f's_mov_b32 s{sK+i}, {4096*(i+1)}')
    I(f's_mul_i32 s3, s{sX}, {576*1152}')
    for reg, e, o in ((sO, 0, 288 + 32), (sPp, 288 + 32, 0), (sOH, 256, 288), (sPH, 288, 256)):
        for x in psel(reg, e * 1152, o * 1152 + 640):
            I(x)
        I(f's_add_u32 s{reg}, s{reg}, s3')
    for x in psel(sT2, 512, -64):
        I(x)
    I([f's_cmp_lt_u32 s{sW}, 2', f's_cselect_b32 s{sH4}, s{sOH}, s{sPH}', f's_cselect_b32 s{sHN}, 0, {KROW2}'])
    I(f's_add_u32 s{sH4}, s{sH4}, s{sT2}')
    I(f's_add_u32 s{sHN}, s{sHN}, s{sT2}')
    I('s_lshl_b32 s3, s2, 2')
    I(f's_add_u32 s3, s3, s{sW}')
    I(f's_lshl_b32 s{sFO}, s3, 6')
    I(f's_mul_i32 s{sT2}, s3, 18432')
    I(f's_add_u32 s{sT2}, s{sT2}, {WS_HHX}')
    Isrd(HXO, 14, f's{sT2}', 18432)
    I('s_xor_b32 s3, s3, 32')
    I(f's_lshl_b32 s{sFP}, s3, 6')
    I(f's_mul_i32 s{sT2}, s3, 18432')
    I(f's_add_u32 s{sT2}, s{sT2}, {WS_HHX}')
    Isrd(HXP, 14, f's{sT2}', 18432)
    I('s_lshr_b32 s3, s2, 3')
    I('s_lshl_b32 s3, s3, 2')
    I(f's_add_u32 s3, s3, s{sW}')
    I('s_mul_i32 s3, s3, 18432')
    I(f's_mul_i32 s{sT2}, s{sX}, {NB_X}')
    I(f's_add_u32 s3, s3, s{sT2}')
    I(f's_add_u32 s3, s3, {WS_PART}')
    Isrd(PT, 14, 's3', 18432)
    Isrd(FL, 14, WS_FLG, 65536)

    frags, mf, stage_pos = [], [], []
    fin_pos, kpos = {}, {}
    for k, stg in enumerate(stages):
        stage_pos.append(len(mf))
        for j, f in enumerate(stg):
            f['stage'] = k
            f['first'] = j == 0
            fi = len(frags)
            frags.append(f)
            for n, (acc, B, first, tok) in enumerate(f['mf']):
                ar = AFR + 4 * (fi % 8)
                if tok and tok not in kpos:
                    kpos[tok] = len(mf)
                mf.append(dict(text=f'v_mfma_f32_16x16x32_bf16 {q(*acc)}, {q("v", ar)}, {q(*B)}, {"0" if first else q(*acc)}',
                               frag=fi, n=n, tok=tok))
            if 'fin' in f:
                fin_pos[f['fin']] = len(mf) - 1
            for x in f.get('extra', []):
                mf.append(dict(text=x, frag=None, n=0, tok=None))
    NM = len(mf)
    p1, p2, pC = stage_pos[n_st0], stage_pos[n_st1], stage_pos[n_st2]
    it[-1]['dl'] = p1 - 60
    D, G = P['D'], P['G']

    used = [0] * (NM + 1)
    bar_at = {}
    for pos, m in enumerate(mf):
        fi = m['frag']
        if fi is not None and fi + D < len(frags):
            used[pos] += 1
            if m['n'] == 0 and frags[fi + D]['first']:
                used[pos] += 2
                bar_at[frags[fi + D]['stage']] = pos
        if pos and fi is not None and m['n'] == 0 and fi % G == 0:
            used[pos - 1] += 1
    bar_at[0] = -1
    side = [[] for _ in range(NM + 1)]

    def place(target, ins, tag=None, provide=None, w=None, slack=6):
        target = max(0, min(int(target), NM))
        w = w or len([x for x in ins if not (isinstance(x, tuple) and x[0] == 'require')])
        pos = next((p for p in range(target, min(target + slack, NM)) if used[p] + min(w, 1) <= 2), target)
        used[pos] += w
        side[pos].append((ins, tag, provide))
        return pos

    last = {}
    for g in groups[:2]:
        for c in g['cells']:
            last[c] = g['stage']
    gi = 2
    cur = 0
    for k in range(NSTG):
        todo = []
        while gi < len(groups) and all(last.get(c, -9) <= k - 2 for c in groups[gi]['cells']) and \
                (k >= n_st0 - 2 or groups[gi]['stage'] <= k + P['la0']):
            todo.append(groups[gi])
            for c in groups[gi]['cells']:
                last[c] = groups[gi]['stage']
            gi += 1
        flat = [(x, g) for g in todo for x in g['ins']]
        a, b = bar_at[k] + 1, (bar_at[k + 1] if k + 1 < NSTG else NM) - 2
        for i, (x, g) in enumerate(flat):
            cur = place(max(cur, a + (b - a) * i / len(flat)), x, f'dma{g["stage"]}') + 1
            assert cur <= bar_at[g['stage']], (k, g['stage'])
    assert gi == len(groups)
    cur = 0
    for kk in range(HPRE, 18):
        p = kpos[f'h{kk - P["HA"]}'] if kk > P['HA'] else 1 + 5 * (kk - HPRE)
        for grp in hload(kk):
            cur = place(max(p, cur), grp) + 1
    place(max(cur, p1 - 20), [f'v_lshlrev_b32 v{vHO}, 4, v{ln}'])
    for kk in range(1, 18):
        mv = hmove(kk)
        cur = kpos[f'h{kk}'] - 24
        for i, x in enumerate(mv):
            pre = [('waitregs', [q('v', STG[(2 * kk + h) % len(STG)]) for h in range(2)])] if i == 0 else []
            cur = place(cur, pre + [x], provide=f'h{kk}' if i == len(mv) - 1 else None, slack=3) + 1
        assert cur < kpos[f'h{kk}']

    rel[0] = p1 + 8
    t0 = TMP
    I(f'v_and_b32 v{t0}, 15, v{ln}')
    I(f'v_lshrrev_b32 v{t0+1}, 2, v{t0}')
    I(f'v_lshl_add_u32 v{t0+1}, v{t0+1}, 4, v{t0}')
    I(f'v_lshlrev_b32 v{t0+1}, 2, v{t0+1}')
    for n in range(2):
        gq = CSB + 8 * n + 4
        for i, mreg in enumerate((M1, M2, M3)):
            I(f'v_cndmask_b32 v{gq}, v{gq}, v{gq+i+1}, s[{mreg}:{mreg+1}]')
        I(f'ds_bpermute_b32 v{gq}, v{t0+1}, v{gq}')
    I([f's_add_u32 s{CS}, s14, {WS_RS}', f's_addc_u32 s{CS+1}, s15, 0'])
    I(['s_and_b32 s3, s2, 15', 's_cmp_eq_u32 s3, 0', f's_cselect_b32 s{CS+2}, {S_*4}, 0'])
    I(f's_lshl_b32 s{sT2}, s{sT}, 2')
    I(f's_add_u32 s{sT2}, s{sT2}, s{sW}')
    I(f's_lshl_b32 s{sT2}, s{sT2}, 7')
    I(f'v_lshlrev_b32 v{t0}, 3, v{t0}')
    for n in range(2):
        I(f'v_mul_f32 v{vNM[n]}, {-1.0/576!r}, v{CSB+8*n}')
        I(f'v_mov_b32 v{t0+2+n}, 0x3727c5ac')
    for n in range(2):
        gq, t = CSB + 8 * n + 4, t0 + 2 + n
        I(f'v_fmac_f32 v{t}, {1.0/576!r}, v{gq}')
        I(f'v_fma_f32 v{t}, -v{vNM[n]}, v{vNM[n]}, v{t}')
        I(f'v_max_f32 v{t}, 0x3727c5ac, v{t}')
        I(f'v_rsq_f32 v{t}, v{t}', 2)
    ncs = [0]

    def cs_read(off):
        b = ncs[0] & 1
        ncs[0] += 1
        I(f'ds_read_b128 {q("v", CSB+8*b)}, v{vCS} offset:{off}')
        I(f'ds_read_b128 {q("v", CSB+8*b+4)}, v{vCS} offset:{off+2048}')
    cs_read(0)
    for n in range(2):
        t = t0 + 2 + n
        I(f'v_mul_f32 v{vC1[n]}, {-LOG2E!r}, v{t}')
        I(f'v_mul_f32 v{t}, v{t}, v{t}')
    I(f'buffer_store_dwordx2 v[{t0+2}:{t0+3}], v{t0}, s[{CS}:{CS+3}], s{sT2} offen {st}')

    def silu(p, T, n, buf, slot):
        (gk, g), (uk, u) = ACC[(p, 0, T, n)], ACC[(p, 1, T, n)]
        e = TMP + 8 + 4 * (n & 1)
        if gk == 'a':
            for r in range(4):
                I(f'v_accvgpr_read_b32 v{TMP+r}, a{g+r}')
            g = TMP
        if uk == 'a':
            for r in range(4):
                I(f'v_accvgpr_read_b32 v{TMP+4+r}, a{u+r}')
            u = TMP + 4
        for r in range(4):
            I(f'v_fmac_f32 v{g+r}, v{vNM[n]}, v{CSB+8*buf+r}')
        for r in range(4):
            I(f'v_mul_f32 v{e+r}, v{vC1[n]}, v{g+r}')
        for r in range(4):
            I(f'v_exp_f32 v{e+r}, v{e+r}', 2)
            I(f'v_fmac_f32 v{u+r}, v{vNM[n]}, v{CSB+8*buf+4+r}')
        for r in range(4):
            I(f'v_add_f32 v{e+r}, 1.0, v{e+r}')
        for r in range(4):
            I(f'v_rcp_f32 v{e+r}, v{e+r}', 2)
            I(f'v_mul_f32 v{u+r}, v{g+r}, v{u+r}')
        for r in range(4):
            I(f'v_mul_f32 v{u+r}, v{u+r}, v{e+r}')
        dst = HH[(slot, n)] + 2 * (T & 1)
        I(f'v_cvt_pk_bf16_f32 v{dst}, v{u}, v{u+1}')
        I(f'v_cvt_pk_bf16_f32 v{dst+1}, v{u+2}, v{u+3}', prov=f'hh{slot}_{n}' if T & 1 else None)
        if T & 1:
            it[-1]['dl'] = kpos[f'hh{slot}_{n}'] - 3
            so, im = soff(slot * 2 + n)
            I(f'buffer_store_dwordx4 {q("v", HH[(slot, n)])}, v{vHO}, s[{HXO}:{HXO+3}], {so} offen offset:{im} sc1', tag=f'hx{p}')

    tiles = [(p, T, SLOTS[p][T // 2]) for p in range(3) for T in range(2 * len(SLOTS[p]))]
    ends = {0: p2 + P['e0'], 1: pC + P['e1'], 2: pC + P['e2']}
    starts = {0: p1 + 8, 1: p2 + 8, 2: pC + 8}
    for i, (p, T, s) in enumerate(tiles):
        if i + 1 < len(tiles):
            p_, T_, s_ = tiles[i + 1]
            if s_ == 8 and T_ == 0:
                for x in psel(sT2, 0, -128 - 1024):
                    I(x)
                I(f'v_add_u32 v{vCS}, s{sT2}, v{vCS}')
            if s == 8 and s_ != 8:
                I(f'v_subrev_u32 v{vCS}, s{sT2}, v{vCS}')
            cs_read(64 * (2 * s_ + (T_ & 1)))
        rel[0] = starts[p]
        for n in range(2):
            silu(p, T, n, i & 1, s)
            if p == 0 and {ACC[(0, 0, T, n)], ACC[(0, 1, T, n)]} & {v for k_, v in ACC.items() if k_[0] == 2}:
                it[-1]['dl'] = min(it[-1]['dl'] or NM, p2 - 4)
        if i + 1 == len(tiles) or tiles[i + 1][0] != p:
            it[-1]['dl'] = min(it[-1]['dl'] or NM, ends[p])
    slow = []
    lastchk = 0
    for p in range(3):
        off = 4 * p
        pf = place(ends[p] + P['d1'], [('waittag', f'hx{p}'), f'buffer_store_dword v{vA}, off, s[{FL}:{FL+3}], s{sFO} offset:{off} sc1'])
        assert pf + P['d2'] > lastchk
        pp = place(pf + P['d2'], [f'buffer_load_dword v{vTMP}, off, s[{FL}:{FL+3}], s{sFP} offset:{off} sc1'])
        pc = place(pp + P['d3'], [f'v_readfirstlane_b32 s3, v{vTMP}'], w=2)
        pc = place(pc + 1, [f's_cmp_lg_u32 s3, 0', ('raw', f's_cbranch_scc0 ffn_slow{p}\nffn_back{p}:')])
        lastchk = pc
        slow.append(f"""ffn_slow{p}:
  {'s_add_u32 s92, s92, 1' if OPT['stamps'] else ''}
  s_mov_b32 s87, 0x40000
ffn_spin{p}:
  buffer_load_dword v{vTMP}, off, s[{FL}:{FL+3}], s{sFP} offset:{off} sc1
  s_waitcnt vmcnt(0)
  v_readfirstlane_b32 s3, v{vTMP}
  s_sub_u32 s87, s87, 1
  s_cbranch_scc1 ffn_back{p}
  s_nop 1
  s_cmp_lg_u32 s3, 0
  s_cbranch_scc0 ffn_spin{p}
  s_branch ffn_back{p}""")
        for s in sorted(SLOTS[p], key=lambda s: kpos[f'hp{s}_0']):
            for n in range(2):
                so, im = soff(s * 2 + n)
                pc = place(pc + P['dl'], [f'buffer_load_dwordx4 {q(*HP[(s, n)])}, v{vHO}, s[{HXP}:{HXP+3}], {so} offen offset:{im} sc1'], provide=f'hp{s}_{n}')
            print(f'   partner slot {s}: loaded at {pc-pC}, used at {kpos[f"hp{s}_0"]-pC}', file=sys.stderr)
    for Pp, fp in sorted(fin_pos.items(), key=lambda x: x[1]):
        rel[0] = fp + 5
        for n in range(2):
            t = CSB + 16 * n
            for h in range(2):
                for r in range(4):
                    I(f'v_accvgpr_read_b32 v{t+4*h+r}, a{((2*Pp+h)*2+n)*4+r}')
            o = t + 8 + 4 * (Pp & 1)
            for i in range(4):
                I(f'v_cvt_pk_bf16_f32 v{o+i}, v{t+2*i}, v{t+2*i+1}')
            so, im = soff(n * 9 + Pp)
            I(f'buffer_store_dwordx4 {q("v", o)}, v{vHO}, s[{PT}:{PT+3}], {so} offen offset:{im} {st}')
        it[-1]['dl'] = min(NM - 1, int(fp + 5 + 26 * P['erate']))
    if OPT['stamps']:
        for r, p in zip((sST + 2, 4, 6, 8, 10, 12), (0, p1, p2, pC, pC + 288, pC + 468)):
            place(p, [f's_memtime s[{r}:{r+1}]'], slack=0)

    cumw = [0]
    for x in it:
        cumw.append(cumw[-1] + x['w'])
    dls = [(x['dl'], j + 1) for j, x in enumerate(it) if x['dl'] is not None]
    freec = [0]
    for p in range(NM):
        freec.append(freec[-1] + max(0, 2 - used[p]))
    j, acc = 0, 0.0
    for pos in range(NM):
        if j >= len(it) or it[j]['rel'] > pos:
            acc = 0.0
            continue
        rate = 0.0
        for d, jj in dls:
            if jj > j and d >= pos:
                k0 = j
                while True:
                    r0 = max(pos, it[k0]['rel'])
                    if r0 == pos:
                        need = cumw[jj] - cumw[j] - (freec[d + 1] - freec[pos])
                        if it[jj - 1]['rel'] <= pos or P.get('look', 1):
                            rate = max(rate, need / (d + 1 - pos))
                    break
        acc += max(rate, 0.0)
        room = max(0, 2 - used[pos])
        while j < len(it) and it[j]['rel'] <= pos and (room > 0 or acc >= 1 or any(d <= pos and jj > j for d, jj in dls)):
            w = it[j]['w']
            side[pos].append((it[j]['ins'], it[j]['tag'], it[j]['prov']))
            take = min(room, w)
            room -= take
            acc -= w - take
            used[pos] += w
            j += 1
    rest = it[j:]
    est = sum(max(16, 4 * (2 + u)) for u in used[:NM]) + 4 * sum(x['w'] for x in rest)
    ph = [0, p1, p2, pC, pC + 288, pC + 468, NM]
    print('   estimated cycles', est, [sum(max(16, 4 * (2 + u)) for u in used[a:b]) for a, b in zip(ph, ph[1:])], 'left after last mfma', len(rest), file=sys.stderr)

    provided = {'h0'}

    def emit_side(ins, tag, prov):
        for x in ins:
            if P.get('novalu') and isinstance(x, str) and x.startswith(('v_fmac', 'v_mul_f32', 'v_exp', 'v_rcp', 'v_add_f32', 'v_cvt', 'v_accvgpr_read')):
                continue
            if P.get('noexch') and ((isinstance(x, str) and ('sc1' in x or 'readfirst' in x)) or (isinstance(x, tuple) and x[0] in ('raw', 'waittag'))):
                continue
            if P.get('nodma') and isinstance(x, str) and x.endswith(' lds'):
                continue
            if P.get('noh') and isinstance(x, str) and f's[{HS}:' in x:
                continue
            if isinstance(x, tuple):
                if x[0] == 'waittag':
                    S.wait_tag(x[1])
                elif x[0] == 'require':
                    assert x[1] in provided, x
                elif x[0] == 'waitregs':
                    S.wait_regs(x[1])
                else:
                    S.raw(x[1])
            else:
                S(x, tag)
        if prov:
            provided.add(prov)

    def order_gap(items):
        if P.get('noorder'):
            return items
        out = []
        for x in items:
            txt = [y for y in x[0] if isinstance(y, str)]
            k = len(out)
            if len(txt) == len(x[0]) and all(not y.startswith('v_') for y in txt):
                mine = [Ins(y) for y in txt]
                rd = set().union(*[i.rd for i in mine])
                wr = set().union(*[i.wr for i in mine])
                while k > 0:
                    prev = out[k - 1][0]
                    if not all(isinstance(y, str) and y.startswith('v_') for y in prev):
                        break
                    pi = [Ins(y) for y in prev]
                    if any((i.wr & (rd | wr)) or (i.rd & wr) for i in pi):
                        break
                    k -= 1
            out.insert(k, x)
        return out

    def read(fi, h):
        f = frags[fi]
        k = f['stage']
        if h == 0 and f['first']:
            if not P.get('nodw') or k < 2:
                S.wait_tag(f'dma{k}')
            if not P.get('nobar'):
                S('s_barrier')
            if P.get('sstamp'):
                if k:
                    S(f'v_writelane_b32 v4, s{88+2*((k-1)&1)}, {k-1}')
                S(f's_memtime s[{88+2*(k&1)}:{89+2*(k&1)}]')
        r = AFR + 4 * (fi % 8) + 2 * h
        S(f'ds_read_b64_tr_b16 v[{r}:{r+1}], v{f["a"]} offset:{f["off"] + 512*h}')

    for fi in range(D):
        read(fi, 0)
        read(fi, 1)
    for pos, m in enumerate(mf):
        fi = m['frag']
        if fi is not None and m['n'] == 0 and fi % G == 0:
            S.wait_regs([q('v', AFR + 4 * (x % 8)) for x in range(fi, min(fi + G, len(frags)))])
        if m['tok']:
            assert m['tok'] in provided, (pos - pC, m)
        S(m['text'])
        if fi is not None and fi + D < len(frags):
            read(fi + D, m['n'])
        for x in order_gap(side[pos]):
            emit_side(*x)
    for x in side[NM]:
        emit_side(*x)
    for x in rest:
        emit_side(x['ins'], x['tag'], x['prov'])
    if OPT['stamps']:
        S('s_memtime s[20:21]')
        S('s_waitcnt vmcnt(0)')
        S('s_memtime s[22:23]')
        S('s_waitcnt lgkmcnt(0)')
        srd(S, FL, 14, 0x5000000, 65536)
        order = [sST, sST + 2, 4, 6, 8, 10, 12, 20, 22, 92]
        for i, r in enumerate(order):
            S(f'v_mov_b32 v{vTMP}, s{r}')
            S(f'buffer_store_dword v{vTMP}, off, s[{FL}:{FL+3}], s{sFO} offset:{4*i}')
    if P.get('sstamp'):
        S(f'v_writelane_b32 v4, s{88+2*((NSTG-1)&1)}, {NSTG-1}')
        S('s_memtime s[20:21]')
        S(f'v_writelane_b32 v4, s20, {NSTG}')
        srd(S, FL, 14, 0x5200000, 1 << 20)
        S(f's_lshl_b32 s3, s{sFO}, 2')
        S(f'v_lshrrev_b32 v{vTMP}, 2, v{vHO}')
        S(f'buffer_store_dword v4, v{vTMP}, s[{FL}:{FL+3}], s3 offen')
        print('STAGE_EST', [sum(max(16, 4 * (2 + u)) for u in used[max(bar_at[k],0):(bar_at[k+1] if k + 1 < NSTG else NM)]) for k in range(NSTG)], file=sys.stderr)
        print('STAGE_MF', [16 * ((bar_at[k+1] if k + 1 < NSTG else NM) - max(bar_at[k],0)) for k in range(NSTG)], file=sys.stderr)
    S('ffn_end:', 'nocheck')
    S('s_endpgm')
    body = S.finalize()
    print(f'ffn: {NM} mfma, {len(S.out)} instr, {S.n_wait} waits, {S.n_nop} nops, {NSTG} stages; p1={p1} p2={p2} pC={pC}', file=sys.stderr)
    return kernel_text('ffn_kernel', [body] + ([] if P.get('noexch') else slow), 512, 256), FFN_LDS
```

```python
import sys
from asmlib import Stream

NAME = 'sequential_preLN__ssm_conv_h3__glu_gated_swiglu__prompt'
S_, D_, F_ = 2048, 576, 4608
A_X, A_K, A_V, A_SH, A_SK, A_SD, A_W1, A_W3, A_W2, A_OUT, A_DBG, A_WS = 0, 8, 16, 24, 32, 40, 56, 64, 72, 80, 88, 96
NB_X = S_ * D_ * 2
NB_W = D_ * F_ * 2
WS_UR = 0x0
WS_XQ = 0x240000
WS_H = 0x6C0000
WS_CS = 0x900000
WS_RS = 0x910000
WS_FLG = 0x920000
WS_PART = 0x1000000
WS_HHX = 0x3000000

OPT = dict(ldflag='', pfflag='', stflag='sc1', stamps=False, rt=False)


def srd(S, d, lo, off, nbytes):
    if isinstance(off, str) or off:
        S(f's_add_u32 s{d}, s{lo}, {off}')
        S(f's_addc_u32 s{d+1}, s{lo+1}, 0')
    else:
        S(f's_mov_b32 s{d}, s{lo}')
        S(f's_mov_b32 s{d+1}, s{lo+1}')
    S(f's_mov_b32 s{d+2}, {nbytes}')
    S(f's_mov_b32 s{d+3}, 0x20000')


def udiv(S, dst, src, c, tmp):
    S(f's_mov_b32 s{tmp}, {(1 << 32) // c + 1}')
    S(f's_mul_hi_u32 s{dst}, s{src}, s{tmp}')


def lo16(S, d, s):
    S(f'v_lshlrev_b32 v{d}, 16, v{s}')


def hi16(S, d, s):
    S(f'v_and_b32 v{d}, 0xffff0000, v{s}')


def xlane_sum(S, x, t, steps):
    for st in steps:
        if st == 8:
            S(f'v_add_f32_dpp v{x}, v{x}, v{x} row_ror:8 row_mask:0xf bank_mask:0xf')
        else:
            S(f'v_mov_b32 v{t}, v{x}')
            S(f'v_permlane{st}_swap_b32 v{t}, v{x}')
            S(f'v_add_f32 v{x}, v{x}, v{t}')


RT_BASE = 0x5100000


def mark(S, i):
    if OPT['rt']:
        S(f's_memrealtime s[{60+2*i}:{61+2*i}]')


def kernel_text(name, parts, vgpr, accum, sgpr=96):
    body = '\n'.join(parts)
    if OPT['rt']:
        kid = ['prep', 'conv', 'ffn', 'red'].index(name.split('_')[0])
        sgpr = 102
        tail = f"""  s_waitcnt vmcnt(0) lgkmcnt(0)
  s_memrealtime s[98:99]
  s_load_dwordx2 s[100:101], s[94:95], {A_WS}
  s_waitcnt lgkmcnt(0)
  s_add_u32 s100, s100, {RT_BASE + kid * 0x10000}
  s_addc_u32 s101, s101, 0
  s_mov_b64 exec, 1
  s_and_b32 s99, s16, 3
  s_lshl_b32 s99, s99, 3
  s_add_u32 s93, s93, s99
  v_mov_b32 v0, s96
  v_mov_b32 v1, s98
  v_mov_b32 v2, s93
  global_store_dwordx2 v2, v[0:1], s[100:101]
  v_mov_b32 v4, s60
  v_mov_b32 v5, s62
  v_mov_b32 v6, s64
  v_mov_b32 v7, s66
  v_lshlrev_b32 v2, 1, v2
  s_add_u32 s100, s100, 0x40000 + {kid * 0x10000}
  s_addc_u32 s101, s101, 0
  global_store_dwordx4 v2, v[4:7], s[100:101]
  s_endpgm"""
        body = body.replace('  s_endpgm', tail)
        body = '  s_memrealtime s[96:97]\n  s_mov_b64 s[94:95], s[0:1]\n  s_lshl_b32 s93, s2, 5\n  s_waitcnt lgkmcnt(0)\n' + body
    return f""".text
.p2align 8
{name}:
{body}
.section .rodata,"a"
.p2align 6
.amdhsa_kernel {name}
  .amdhsa_next_free_vgpr {vgpr}
  .amdhsa_next_free_sgpr {sgpr}
  .amdhsa_accum_offset {accum}
  .amdhsa_group_segment_fixed_size 0
  .amdhsa_kernarg_size 104
  .amdhsa_user_sgpr_count 2
  .amdhsa_user_sgpr_kernarg_segment_ptr 1
  .amdhsa_system_sgpr_workgroup_id_x 1
  .amdhsa_float_denorm_mode_32 3
.end_amdhsa_kernel
"""


K1_NWG = 416


def gen_prep():
    ld, st = OPT['ldflag'], OPT['stflag']
    parts = []
    S = Stream('prep0')
    S(f's_cmp_ge_u32 s2, {K1_NWG}')
    S('s_cbranch_scc1 prep_end')
    S(f's_load_dwordx4 s[4:7], s[0:1], {A_X}')
    S(f's_load_dwordx4 s[8:11], s[0:1], {A_V}')
    S(f's_load_dwordx2 s[12:13], s[0:1], {A_SK}')
    S(f's_load_dwordx2 s[14:15], s[0:1], {A_WS}')
    S('v_lshrrev_b32 v2, 6, v0')
    S('v_and_b32 v1, 63, v0')
    S('v_readfirstlane_b32 s16, v2')
    S('s_waitcnt lgkmcnt(0)')
    mark(S, 0)
    S('s_waitcnt lgkmcnt(0)')
    S('s_cmp_ge_u32 s2, 352')
    S('s_cbranch_scc1 prep_pf')
    S('s_cmp_ge_u32 s2, 64')
    S('s_cbranch_scc1 prep_kv')
    parts.append(S.finalize())

    S = Stream('prep_ln')
    srd(S, 20, 4, 0, NB_X)
    srd(S, 24, 14, WS_XQ, 2 * NB_X)
    S('s_lshl_b32 s3, s2, 5')
    S('s_lshl_b32 s17, s16, 3')
    S('s_add_u32 s3, s3, s17')
    S('v_and_b32 v2, 7, v1')
    S('v_add_u32 v2, s3, v2')
    S('v_lshrrev_b32 v3, 3, v1')
    S('v_mul_u32_u24 v4, 1152, v2')
    S('v_lshl_add_u32 v4, v3, 3, v4')
    for i in range(18):
        S(f'buffer_load_dwordx2 v[{10+4*i}:{11+4*i}], v4, s[20:23], 0 offen offset:{64*i} {ld}')
    S('v_lshlrev_b32 v3, 15, v3')
    S('v_lshl_add_u32 v3, v2, 4, v3')
    mark(S, 1)
    if OPT['rt']:
        S('s_waitcnt vmcnt(0)')
    mark(S, 2)
    F = 84
    for i in range(18):
        lo16(S, F + 4 * i, 10 + 4 * i)
        hi16(S, F + 4 * i + 1, 10 + 4 * i)
        lo16(S, F + 4 * i + 2, 11 + 4 * i)
        hi16(S, F + 4 * i + 3, 11 + 4 * i)
        if i == 0:
            continue
        if i == 1:
            S(f'v_pk_add_f32 v[4:5], v[{F}:{F+1}], v[{F+4}:{F+5}]')
            S(f'v_pk_add_f32 v[6:7], v[{F+2}:{F+3}], v[{F+6}:{F+7}]')
        else:
            S(f'v_pk_add_f32 v[4:5], v[4:5], v[{F+4*i}:{F+4*i+1}]')
            S(f'v_pk_add_f32 v[6:7], v[6:7], v[{F+4*i+2}:{F+4*i+3}]')
    S('v_pk_add_f32 v[4:5], v[4:5], v[6:7]')
    S('v_add_f32 v4, v4, v5')
    xlane_sum(S, 4, 5, (8, 16, 32))
    S(f'v_mul_f32 v4, {-1.0/576!r}, v4')
    S('v_mov_b32 v5, v4')
    for i in range(36):
        S(f'v_pk_add_f32 v[{F+2*i}:{F+2*i+1}], v[{F+2*i}:{F+2*i+1}], v[4:5]')
    S(f'v_pk_mul_f32 v[6:7], v[{F}:{F+1}], v[{F}:{F+1}]')
    S(f'v_pk_mul_f32 v[8:9], v[{F+2}:{F+3}], v[{F+2}:{F+3}]')
    for i in range(2, 36):
        a = 6 + 2 * (i & 1)
        S(f'v_pk_fma_f32 v[{a}:{a+1}], v[{F+2*i}:{F+2*i+1}], v[{F+2*i}:{F+2*i+1}], v[{a}:{a+1}]')
    S('v_pk_add_f32 v[6:7], v[6:7], v[8:9]')
    S('v_add_f32 v6, v6, v7')
    xlane_sum(S, 6, 7, (8, 16, 32))
    S('v_mov_b32 v7, 0x3727c5ac')
    S(f'v_fmac_f32 v7, {1.0/576!r}, v6')
    S('v_rsq_f32 v6, v7')
    S('v_mov_b32 v7, v6')
    for i in range(18):
        for h in range(2):
            r = F + 4 * i + 2 * h
            S(f'v_pk_mul_f32 v[{r}:{r+1}], v[{r}:{r+1}], v[6:7]')
            S(f'v_cvt_pk_bf16_f32 v{12+4*i+h}, v{r}, v{r+1}')
        S(f's_mov_b32 s3, {i*262144}')
        S(f'buffer_store_dwordx4 v[{10+4*i}:{13+4*i}], v3, s[24:27], s3 offen {st}')
    mark(S, 3)
    S('s_endpgm')
    parts.append(S.finalize())

    S = Stream('prep_kv')
    S('prep_kv:')
    srd(S, 20, 6, 0, NB_X)
    srd(S, 24, 8, 0, NB_X)
    srd(S, 28, 10, 0, D_ * 8)
    srd(S, 32, 14, WS_UR, NB_X)
    S('s_sub_u32 s3, s2, 64')
    udiv(S, 17, 3, 9, 18)
    S('s_mul_i32 s18, s17, 9')
    S('s_sub_u32 s18, s3, s18')
    S('s_lshl_b32 s18, s18, 6')
    S('s_lshl_b32 s19, s16, 4')
    S('s_add_u32 s18, s18, s19')
    S('s_lshl_b32 s17, s17, 6')
    S('v_and_b32 v2, 3, v1')
    S('v_lshl_add_u32 v2, v2, 2, s18')
    S('v_and_b32 v3, 60, v1')
    S('v_add_u32 v3, s17, v3')
    S('v_mul_u32_u24 v4, 1152, v3')
    S('v_lshl_add_u32 v4, v2, 1, v4')
    S('v_subrev_u32 v5, 3456, v4')
    S('v_lshlrev_b32 v6, 3, v2')
    for d in range(3):
        S(f'buffer_load_dwordx2 v[{10+2*d}:{11+2*d}], v5, s[20:23], 0 offen offset:{1152*d} {ld}')
    for d in range(4):
        S(f'buffer_load_dwordx2 v[{16+2*d}:{17+2*d}], v4, s[20:23], 0 offen offset:{1152*d} {ld}')
    S('buffer_load_dwordx4 v[32:35], v6, s[28:31], 0 offen')
    S('buffer_load_dwordx4 v[36:39], v6, s[28:31], 0 offen offset:16')
    for d in range(4):
        S(f'buffer_load_dwordx2 v[{24+2*d}:{25+2*d}], v4, s[24:27], 0 offen offset:{1152*d} {ld}')
    S('v_lshlrev_b32 v7, 12, v2')
    S('v_lshlrev_b32 v3, 1, v3')
    S('v_sub_u32 v7, v7, v3')
    S('v_add_u32 v7, 4088, v7')
    S('s_mov_b32 s36, 4096')
    S('s_mov_b32 s37, 8192')
    S('s_mov_b32 s38, 12288')
    mark(S, 1)
    if OPT['rt']:
        S('s_waitcnt vmcnt(0)')
    mark(S, 2)
    for d in range(7):
        for h in range(2):
            lo16(S, 40 + 4 * d + 2 * h, 10 + 2 * d + h)
            hi16(S, 41 + 4 * d + 2 * h, 10 + 2 * d + h)
    for c in range(4):
        for h in range(2):
            lo16(S, 84 + 4 * (2 * h) + c, 32 + 2 * c + h)
            hi16(S, 84 + 4 * (2 * h + 1) + c, 32 + 2 * c + h)
    for i in range(4):
        for p in range(2):
            o = 100 + 4 * i + 2 * p
            for j in range(4):
                kf = 40 + 4 * (i + 3 - j) + 2 * p
                sh = 84 + 4 * j + 2 * p
                if j == 0:
                    S(f'v_pk_mul_f32 v[{o}:{o+1}], v[{kf}:{kf+1}], v[{sh}:{sh+1}]')
                else:
                    S(f'v_pk_fma_f32 v[{o}:{o+1}], v[{kf}:{kf+1}], v[{sh}:{sh+1}], v[{o}:{o+1}]')
    for i in range(4):
        for h in range(2):
            lo16(S, 68 + 4 * i + 2 * h, 24 + 2 * i + h)
            hi16(S, 69 + 4 * i + 2 * h, 24 + 2 * i + h)
            o = 100 + 4 * i + 2 * h
            S(f'v_pk_mul_f32 v[{o}:{o+1}], v[{o}:{o+1}], v[{68+4*i+2*h}:{69+4*i+2*h}]')
    for c in range(4):
        S(f'v_cvt_pk_bf16_f32 v{116+2*c}, v{112+c}, v{108+c}')
        S(f'v_cvt_pk_bf16_f32 v{117+2*c}, v{104+c}, v{100+c}')
        S(f'buffer_store_dwordx2 v[{116+2*c}:{117+2*c}], v7, s[32:35], {"0" if c == 0 else f"s{35+c}"} offen {st}')
    mark(S, 3)
    S('s_endpgm')
    parts.append(S.finalize())

    S = Stream('prep_pf')
    S('prep_pf:')
    S('s_sub_u32 s3, s2, 352')
    srd(S, 24, 14, WS_FLG, 65536)
    S('v_mov_b32 v8, 0')
    S('v_mov_b32 v9, 0')
    S('s_lshl_b32 s17, s3, 10')
    S('v_lshl_add_u32 v2, v0, 2, s17')
    S(f'buffer_store_dword v8, v2, s[24:27], 0 offen {st}')
    S('s_and_b32 s17, s3, 7')
    S('s_lshr_b32 s18, s3, 3')
    S('v_lshlrev_b32 v2, 4, v0')
    S('s_cmp_ge_u32 s18, 6')
    S('s_cbranch_scc1 prep_pfc')
    srd(S, 20, 12, 0, NB_X)
    S('s_mul_i32 s18, s18, 24')
    S('s_add_u32 s18, s18, s17')
    S('s_lshl_b32 s18, s18, 14')
    for i in range(12):
        S(f's_add_u32 s3, s18, {(i//4)*8*16384 + (i%4)*4096}')
        S(f'buffer_load_dwordx4 v[{10+4*i}:{13+4*i}], v2, s[20:23], s3 offen {OPT["pfflag"]}')
    S('s_waitcnt vmcnt(0)')
    S('s_endpgm')
    parts.append(S.finalize())
    S = Stream('prep_pfc')
    S('prep_pfc:')
    S('s_getpc_b64 s[20:21]')
    parts.append(S.finalize())
    parts.append('prep_pc:\n  s_add_u32 s20, s20, conv_kernel-prep_pc\n  s_addc_u32 s21, s21, 0\n'
                 '  s_mov_b32 s22, code_end-conv_kernel\n  s_mov_b32 s23, 0x20000')
    S = Stream('prep_pfc2')
    S('s_sub_u32 s18, s18, 6')
    S('s_mul_i32 s18, s18, 40960')
    for i in range(10):
        S(f's_add_u32 s3, s18, {i*4096}')
        S(f'buffer_load_dwordx4 v[{10+4*i}:{13+4*i}], v2, s[20:23], s3 offen')
    S('s_waitcnt vmcnt(0)')
    S('prep_end:')
    S('s_endpgm')
    parts.append(S.finalize())
    return kernel_text('prep_kernel', parts, 160, 160)


CV_CH = 12928
CV_Y = 4 * CV_CH
CV_LDS = CV_Y + 32768


def gen_conv():
    ld, st = OPT['ldflag'], OPT['stflag']
    parts = []
    S = Stream('conv0')
    S('s_cmp_ge_u32 s2, 256')
    S('s_cbranch_scc1 conv_end')
    S(f's_load_dwordx4 s[4:7], s[0:1], {A_SK}')
    S(f's_load_dwordx4 s[8:11], s[0:1], {A_W1}')
    S(f's_load_dwordx2 s[12:13], s[0:1], {A_W2}')
    S(f's_load_dwordx2 s[14:15], s[0:1], {A_WS}')
    S('v_lshrrev_b32 v2, 6, v0')
    S('v_and_b32 v1, 63, v0')
    S('v_readfirstlane_b32 s16, v2')
    S('s_waitcnt lgkmcnt(0)')
    mark(S, 0)
    S('s_waitcnt lgkmcnt(0)')
    S('s_cmp_ge_u32 s2, 144')
    S('s_cbranch_scc1 conv_pf')
    parts.append(S.finalize())

    S = Stream('conv')
    srd(S, 20, 14, WS_UR, NB_X)
    srd(S, 24, 4, 0, NB_X)
    srd(S, 28, 6, 0, D_ * 2)
    srd(S, 32, 14, WS_XQ, 2 * NB_X)
    srd(S, 36, 14, WS_H, NB_X)
    S('s_lshl_b32 s3, s2, 2')
    S('s_add_u32 s3, s3, s16')
    S('s_lshl_b32 s17, s3, 12')
    S(f's_mul_i32 s18, s16, {CV_CH}')
    S('v_lshlrev_b32 v2, 4, v1')
    S('v_add_u32 v3, 2, v2')
    S('s_mov_b32 m0, s18')
    for i in range(4):
        S(f'buffer_load_dwordx4 v2, s[20:23], s17 offen offset:{1024*i} lds', 'dma')
    S(f's_add_u32 m0, s18, {4608+32}')
    for i in range(4):
        S(f'buffer_load_dwordx4 v2, s[24:27], s17 offen offset:{1024*i} lds', 'dma')
    S(f's_add_u32 m0, s18, {4608+4160+32}')
    for i in range(4):
        S(f'buffer_load_dwordx4 v3, s[24:27], s17 offen offset:{1024*i} lds', 'dma')
    S('v_mov_b32 v4, 0')
    S('s_lshl_b32 s19, s3, 1')
    S('buffer_load_ushort v5, v4, s[24:27], s17 offen')
    S('buffer_load_ushort v6, v4, s[28:31], s19 offen')
    XQ = 180
    S('s_lshl_b32 s19, s2, 15')
    S('v_lshlrev_b32 v7, 5, v0')
    for it in range(4):
        S(f's_add_u32 s40, s19, {it*8192}')
        S(f'buffer_load_dwordx4 v[{XQ+8*it}:{XQ+8*it+3}], v7, s[32:35], s40 offen')
        S(f'buffer_load_dwordx4 v[{XQ+8*it+4}:{XQ+8*it+7}], v7, s[32:35], s40 offen offset:16')
    S('v_mov_b32 v8, 0')
    S('v_mov_b32 v9, 0')
    S('v_lshl_add_u32 v10, v1, 3, s18')
    S('ds_write_b64 v10, v[8:9] offset:4096')
    S('v_and_b32 v11, 15, v1')
    S('v_lshrrev_b32 v12, 4, v1')
    S('v_and_b32 v13, 1, v1')
    S('v_cmp_eq_u32 vcc, 1, v13')
    S('v_mov_b32 v13, 4160')
    S('v_cndmask_b32 v13, v13, 2, vcc')
    S('v_lshl_add_u32 v13, v11, 1, v13')
    S('v_lshl_add_u32 v13, v12, 4, v13')
    S(f's_add_u32 s40, s18, 4608')
    S('v_add_u32 v16, s40, v13')
    for qp in range(1, 4):
        S(f'v_add_u32 v{16+qp}, {1024*qp}, v16')
    S('v_lshlrev_b32 v13, 5, v11')
    S('v_sub_u32 v13, 480, v13')
    S('v_lshl_add_u32 v13, v12, 4, v13')
    S('v_add_u32 v15, s18, v13')
    S('v_and_b32 v13, 7, v1')
    S('v_lshlrev_b32 v13, 2, v13')
    S('v_bfe_u32 v14, v1, 3, 1')
    S('v_mul_u32_u24 v14, 4160, v14')
    S('v_add3_u32 v13, v13, v14, s40')
    S('v_lshlrev_b32 v5, 16, v5')
    S('v_cmp_eq_u32 vcc, 15, v11')
    S('v_cndmask_b32 v14, 0, v5, vcc')
    S('ds_write_b32 v13, v14')
    S('v_sub_u32 v13, 15, v11')
    S('v_and_b32 v14, 1, v13')
    S('v_lshlrev_b32 v14, 4, v14')
    S('v_lshlrev_b32 v6, v14, v6')
    S('v_lshrrev_b32 v13, 1, v13')
    S('v_lshlrev_b32 v14, 2, v12')
    S('v_sub_u32 v13, v13, v14')
    for dw in range(4):
        S(f'v_cmp_eq_u32 vcc, {dw}, v13')
        S(f'v_cndmask_b32 v{176+dw}, 0, v6, vcc')
    S('v_lshlrev_b32 v13, 6, v11')
    S('v_lshl_add_u32 v13, v12, 4, v13')
    S('s_lshl_b32 s40, s16, 13')
    S(f's_add_u32 s40, s40, {CV_Y}')
    S('v_add_u32 v12, s40, v13')
    S('v_lshlrev_b32 v13, 3, v0')
    S(f'v_add_u32 v13, {CV_Y}, v13')
    S('v_lshlrev_b32 v14, 4, v0')
    S.wait_tag('dma')
    S('s_waitcnt lgkmcnt(0)')
    mark(S, 1)
    ACC, AF, BF = 20, [52, 84], [116, 148 - 4]
    BF = [116, 212]

    def reads(r):
        a, b = AF[r & 1], BF[r & 1]
        L = []
        order = [('A', 0), ('B', 0)]
        for k in range(1, 8):
            order += [('B', k), ('A', k)]
        for kind, k in order:
            if kind == 'A':
                o = (k & 1) * 128 + 16 * r
                L.append(f'ds_read2_b32 v[{a+4*k}:{a+4*k+1}], v{16+(k>>1)} offset0:{o} offset1:{o+1}')
                L.append(f'ds_read2_b32 v[{a+4*k+2}:{a+4*k+3}], v{16+(k>>1)} offset0:{o+2} offset1:{o+3}')
            else:
                L.append(f'ds_read_b128 v[{b+4*k}:{b+4*k+3}], v15 offset:{512*(7-k)+64*r}')
        return L

    for x in reads(0):
        S(x)
    first = [True] * 8
    for r in range(8):
        a, b = AF[r & 1], BF[r & 1]
        pairs = sorted([(Q, m) for Q in range(8) for m in range(8) if Q + m <= 7], key=lambda p: (max(p), p[0] + p[1]))
        mf = []
        for Q, m in pairs:
            n = Q + m
            c = '0' if first[n] else f'v[{ACC+4*n}:{ACC+4*n+3}]'
            first[n] = False
            mf.append(f'v_mfma_f32_16x16x32_bf16 v[{ACC+4*n}:{ACC+4*n+3}], v[{a+4*Q}:{a+4*Q+3}], v[{b+4*m}:{b+4*m+3}], {c}')
        if r == 0:
            for n in range(8):
                mf.append(f'v_mfma_f32_16x16x32_bf16 v[{ACC+4*n}:{ACC+4*n+3}], v[176:179], v[{b+4*n}:{b+4*n+3}], v[{ACC+4*n}:{ACC+4*n+3}]')
        nxt = reads(r + 1) if r < 7 else []
        lag = 8 if r == 0 else 2
        for i, m in enumerate(mf):
            S(m)
            if i >= lag and nxt:
                S(nxt.pop(0))
        assert not nxt
    mark(S, 2)
    for n in range(8):
        S(f'ds_write_b128 v12, v[{ACC+4*n}:{ACC+4*n+3}] offset:{1024*n}')
    S('s_waitcnt lgkmcnt(0)')
    S('s_barrier')
    Y = 52
    for it in range(4):
        for c in range(4):
            S(f'ds_read_b64 v[{Y+8*it+2*c}:{Y+8*it+2*c+1}], v13 offset:{c*8192+2048*it}')
    S('s_lshl_b32 s19, s2, 14')
    T = 100
    for it in range(4):
        for tk in range(2):
            x = XQ + 8 * it + 4 * tk
            for h in range(2):
                lo16(S, T, x + h)
                hi16(S, T + 1, x + h)
                lo16(S, T + 2, x + 2 + h)
                hi16(S, T + 3, x + 2 + h)
                S(f'v_fmac_f32 v{T}, v{T+2}, v{Y+8*it+2*(2*h)+tk}')
                S(f'v_fmac_f32 v{T+1}, v{T+3}, v{Y+8*it+2*(2*h+1)+tk}')
                S(f'v_cvt_pk_bf16_f32 v{108+4*it+2*tk+h}, v{T}, v{T+1}')
        S(f's_add_u32 s40, s19, {it*4096}')
        S(f'buffer_store_dwordx4 v[{108+4*it}:{111+4*it}], v14, s[36:39], s40 offen {st}')
    mark(S, 3)
    S('s_endpgm')
    parts.append(S.finalize())

    S = Stream('conv_pf')
    S('conv_pf:')
    S('s_sub_u32 s3, s2, 144')
    S('s_and_b32 s17, s3, 7')
    S('s_lshr_b32 s18, s3, 3')
    S('s_cmp_ge_u32 s18, 9')
    S('s_cbranch_scc1 conv_pf2')
    srd(S, 20, 8, 0, NB_W)
    srd(S, 24, 10, 0, NB_W)
    srd(S, 28, 14, WS_CS, 2 * F_ * 4)
    S('s_mul_i32 s17, s17, 1152')
    S('s_lshl_b32 s18, s18, 7')
    S('s_add_u32 s17, s17, s18')
    S(f's_mul_i32 s18, s16, {144*9216}')
    S('s_add_u32 s18, s18, s17')
    S('v_lshrrev_b32 v2, 3, v1')
    S('v_mul_u32_u24 v2, 9216, v2')
    S('v_and_b32 v3, 7, v1')
    S('v_lshl_add_u32 v2, v3, 4, v2')
    for mtx in range(2):
        for i in range(18):
            r = 32 + 72 * mtx + 4 * i
            S(f's_add_u32 s3, s18, {i*8*9216}')
            S(f'buffer_load_dwordx4 v[{r}:{r+3}], v2, s[{20+4*mtx}:{23+4*mtx}], s3 offen {OPT["pfflag"]}')
    mark(S, 1)
    for mtx in range(2):
        acc = 8 + 8 * mtx
        for i in range(18):
            r = 32 + 72 * mtx + 4 * i
            for dw in range(4):
                if i == 0:
                    lo16(S, acc + 2 * dw, r + dw)
                    hi16(S, acc + 2 * dw + 1, r + dw)
                else:
                    t = 24 + 2 * dw
                    lo16(S, t, r + dw)
                    hi16(S, t + 1, r + dw)
                    S(f'v_pk_add_f32 v[{acc+2*dw}:{acc+2*dw+1}], v[{acc+2*dw}:{acc+2*dw+1}], v[{t}:{t+1}]')
    mark(S, 2)
    for e in range(16):
        xlane_sum(S, 8 + e, 24 + (e & 7), (8, 16, 32))
    S('s_lshl_b32 s3, s16, 9')
    S('v_lshl_add_u32 v4, v3, 5, s3')
    S('ds_write_b128 v4, v[8:11]')
    S('ds_write_b128 v4, v[12:15] offset:16')
    S('ds_write_b128 v4, v[16:19] offset:256')
    S('ds_write_b128 v4, v[20:23] offset:272')
    S('s_waitcnt lgkmcnt(0)')
    S('s_barrier')
    S('v_and_b32 v4, 127, v0')
    S('v_lshlrev_b32 v5, 2, v4')
    for w in range(4):
        S(f'ds_read_b32 v{8+w}, v5 offset:{512*w}')
    S('v_add_f32 v8, v8, v9')
    S('v_add_f32 v10, v10, v11')
    S('v_add_f32 v8, v8, v10')
    S('v_lshrrev_b32 v5, 6, v4')
    S(f'v_mul_u32_u24 v5, {F_*4}, v5')
    S('v_and_b32 v4, 63, v4')
    S('v_lshl_add_u32 v5, v4, 2, v5')
    S('s_lshl_b32 s17, s17, 1')
    S(f'buffer_store_dword v8, v5, s[28:31], s17 offen {st}')
    S('s_endpgm')
    parts.append(S.finalize())
    S = Stream('conv_pf2')
    S('conv_pf2:')
    srd(S, 20, 12, 0, NB_W)
    S('s_sub_u32 s18, s18, 9')
    S('s_mul_i32 s18, s18, 132096')
    S('s_mul_i32 s17, s17, 663552')
    S('s_add_u32 s18, s18, s17')
    S('v_lshlrev_b32 v2, 4, v0')
    for i in range(33):
        S(f's_add_u32 s3, s18, {i*4096}')
        S(f'buffer_load_dwordx4 v[{8+4*i}:{11+4*i}], v2, s[20:23], s3 offen {OPT["pfflag"]}')
    S('s_waitcnt vmcnt(0)')
    S('conv_end:')
    S('s_endpgm')
    parts.append(S.finalize())
    return kernel_text('conv_kernel', parts, 248, 248)


def gen_red():
    S = Stream('red')
    S('s_cmp_ge_u32 s2, 576')
    S('s_cbranch_scc1 red_end')
    S(f's_load_dwordx2 s[4:5], s[0:1], {A_OUT}')
    S(f's_load_dwordx2 s[14:15], s[0:1], {A_WS}')
    S('v_lshrrev_b32 v2, 6, v0')
    S('v_and_b32 v1, 63, v0')
    S('v_readfirstlane_b32 s16, v2')
    S('s_lshl_b32 s3, s2, 2')
    S('s_add_u32 s3, s3, s16')
    S('s_waitcnt lgkmcnt(0)')
    srd(S, 20, 14, WS_PART, 8 * NB_X)
    srd(S, 24, 14, WS_H, NB_X)
    srd(S, 28, 14, WS_RS, S_ * 4)
    srd(S, 32, 4, 0, NB_X)
    S('s_lshl_b32 s17, s3, 10')
    S('v_lshlrev_b32 v2, 4, v1')
    for p in range(8):
        S(f's_add_u32 s18, s17, {p*NB_X}')
        S(f'buffer_load_dwordx4 v[{16+4*p}:{19+4*p}], v2, s[20:23], s18 offen')
    udiv(S, 17, 3, 9, 18)
    S('s_mul_i32 s18, s17, 9')
    S('s_sub_u32 s18, s3, s18')
    S('s_lshr_b32 s19, s17, 4')
    S('s_lshl_b32 s19, s19, 2')
    S('s_bfe_u32 s36, s17, 0x20001')
    S('s_add_u32 s19, s19, s36')
    S('s_lshl_b32 s19, s19, 5')
    S('s_and_b32 s36, s17, 1')
    S('s_add_u32 s19, s19, s36')
    S('s_bfe_u32 s36, s17, 0x10003')
    S('s_lshl_b32 s37, s18, 5')
    S('s_mul_i32 s38, s36, 320')
    S('s_add_u32 s37, s37, s38')
    S('s_lshl_b32 s38, s36, 5')
    S('s_add_u32 s38, s38, 256')
    S('s_cmp_lt_u32 s18, 8')
    S('s_cselect_b32 s37, s37, s38')
    S('v_and_b32 v3, 15, v1')
    S('v_lshl_add_u32 v3, v3, 1, s19')
    S('v_lshrrev_b32 v4, 4, v1')
    S('v_lshlrev_b32 v5, 14, v4')
    S('v_lshl_add_u32 v5, v3, 3, v5')
    S('s_lshl_b32 s38, s37, 12')
    S('s_add_u32 s39, s38, 65536')
    S('buffer_load_dwordx2 v[8:9], v5, s[24:27], s38 offen')
    S('buffer_load_dwordx2 v[10:11], v5, s[24:27], s39 offen')
    S('v_lshlrev_b32 v6, 2, v3')
    S('buffer_load_dword v7, v6, s[28:31], 0 offen')
    S('v_mul_u32_u24 v3, 1152, v3')
    S('v_and_b32 v6, 1, v4')
    S('v_lshl_add_u32 v3, v6, 5, v3')
    S('v_lshrrev_b32 v6, 1, v4')
    S('v_lshl_add_u32 v3, v6, 4, v3')
    S('s_lshl_b32 s37, s37, 1')
    A = 48
    for p in range(8):
        for dw in range(4):
            if p == 0:
                lo16(S, A + 2 * dw, 16 + dw)
                hi16(S, A + 2 * dw + 1, 16 + dw)
            else:
                t = 56 + 2 * dw
                lo16(S, t, 16 + 4 * p + dw)
                hi16(S, t + 1, 16 + 4 * p + dw)
                S(f'v_pk_add_f32 v[{A+2*dw}:{A+2*dw+1}], v[{A+2*dw}:{A+2*dw+1}], v[{t}:{t+1}]')
    for dw in range(4):
        t = 56 + 2 * dw
        lo16(S, t, 8 + dw)
        hi16(S, t + 1, 8 + dw)
        S(f'v_fmac_f32 v{t}, v7, v{A+2*dw}')
        S(f'v_fmac_f32 v{t+1}, v7, v{A+2*dw+1}')
        S(f'v_cvt_pk_bf16_f32 v{12+dw}, v{t}, v{t+1}')
    S('v_permlane16_swap_b32 v12, v14')
    S('v_permlane16_swap_b32 v13, v15')
    S('buffer_store_dwordx4 v[12:15], v3, s[32:35], s37 offen')
    S('red_end:')
    S('s_endpgm')
    return kernel_text('red_kernel', [S.finalize()], 64, 64)


def unpack_hhx(t):
    import torch
    out = torch.zeros(2048, 4608)
    for wg in range(256):
        x, p, tile = wg & 7, (wg >> 3) & 1, wg >> 4
        fo = [32 * i for i in range(9)] if p == 0 else [32 + 32 * i for i in range(8)] + [0]
        for s in range(9):
            f0 = 288 * (2 * x + p) + fo[s]
            a = t[wg, :, s].reshape(4, 2, 4, 16, 2, 4)
            a = a.permute(0, 3, 1, 4, 2, 5).reshape(128, 32)
            out[128 * tile:128 * tile + 128, f0:f0 + 32] = a
    return out


def build(ffn_text, ffn_lds):
    head = f"""; H3 long-convolution block + SwiGLU FFN with pre-LayerNorm, four launches (generated by my gen.py)
; @launch kernel=prep_kernel grid=({K1_NWG},1,1) block=(256,1,1) lds=0
; @launch kernel=conv_kernel grid=(256,1,1) block=(256,1,1) lds={CV_LDS}
; @launch kernel=ffn_kernel grid=(256,1,1) block=(256,1,1) lds={ffn_lds}
; @launch kernel=red_kernel grid=(576,1,1) block=(256,1,1) lds=0
.amdgcn_target "amdgcn-amd-amdhsa--gfx950"
"""
    return head + gen_prep() + gen_conv() + ffn_text + gen_red() + '.text\ncode_end:\n  s_endpgm\n'


if __name__ == '__main__':
    import gen as _g
    from gen_ffn import gen_ffn
    P = {}
    for a in sys.argv[2:]:
        k, v = a.split('=')
        v = eval(v)
        if k in OPT:
            OPT[k] = v
            _g.OPT[k] = v
        else:
            P[k] = v
    txt, lds = gen_ffn(P)
    out = sys.argv[1] if len(sys.argv) > 1 else f'cdna_kernels/{NAME}.s'
    open(out, 'w').write(build(txt, lds))
    print('wrote', out)
```

```python
import re

REG_RE = re.compile(r'^(-|\|)?(abs\()?(v|a|s)(\d+|\[(\d+):(\d+)\])\)?\|?$')


def regs_of(tok):
    tok = tok.strip()
    if tok in ('vcc', 'vcc_lo', 'vcc_hi'):
        return {'vcc'}
    if tok in ('exec', 'exec_lo', 'exec_hi'):
        return {'exec'}
    if tok == 'm0':
        return {'m0'}
    m = REG_RE.match(tok)
    if not m:
        return set()
    k = m.group(3)
    if m.group(5) is not None:
        return {f'{k}{i}' for i in range(int(m.group(5)), int(m.group(6)) + 1)}
    return {f'{k}{m.group(4)}'}


TRANS = ('v_exp_f32', 'v_log_f32', 'v_rcp_f32', 'v_rsq_f32', 'v_sqrt_f32', 'v_sin_f32', 'v_cos_f32')
RMW = ('v_fmac_f32', 'v_dot2c_f32_bf16', 'v_pk_fmac', 'v_writelane')


class Ins:
    __slots__ = ('text', 'op', 'rd', 'wr', 'cls', 'tag', 'passes', 'srcc', 'wide', 'dpp', 'ab')

    def __init__(self, text, tag=None):
        self.text = text
        self.tag = tag
        t = text.split(';')[0].strip()
        parts = t.split(None, 1)
        op = parts[0]
        self.op = op
        rest = parts[1] if len(parts) > 1 else ''
        toks = [x.strip() for x in rest.split(',')] if rest else []
        mods = ''
        if toks:
            sp = toks[-1].split(None, 1)
            toks[-1] = sp[0]
            mods = sp[1] if len(sp) > 1 else ''
        R = [regs_of(x) for x in toks]
        rd, wr = set(), set()
        self.passes = 0
        self.ab = (R[1] | R[2]) if len(R) > 2 else set()
        self.srcc = set()
        self.wide = False
        self.dpp = ('_dpp' in op) or ('row_' in mods) or ('quad_perm' in mods) or ('wave_' in mods)
        base = op.replace('_e32', '').replace('_e64', '').replace('_dpp', '').replace('_sdwa', '')
        if op.startswith('v_mfma'):
            cls = 'mfma'
            wr = R[0]
            rd = R[1] | R[2] | R[3]
            self.srcc = R[3]
            self.passes = 8 if '32x32' in op else 4
        elif op.startswith('ds_read') or op.startswith('ds_bpermute') or op.startswith('ds_swizzle'):
            cls = 'lds'
            wr = R[0]
            for r in R[1:]:
                rd |= r
        elif op.startswith('ds_write') or op.startswith('ds_add'):
            cls = 'lds'
            for r in R:
                rd |= r
        elif op.startswith('buffer_load') or op.startswith('global_load'):
            cls = 'vm'
            if ' lds' in (' ' + mods) or op.startswith('global_load_lds'):
                for r in R:
                    rd |= r
                rd |= {'m0'}
                cls = 'vmlds'
            else:
                wr = R[0]
                for r in R[1:]:
                    rd |= r
        elif op.startswith('buffer_store') or op.startswith('global_store'):
            cls = 'vmst'
            for r in R:
                rd |= r
            self.wide = op.endswith('x4') or op.endswith('x3')
            self.srcc = R[0] if op.startswith('buffer_store') else R[1]
        elif op.startswith('buffer_atomic') or op.startswith('global_atomic'):
            cls = 'vm'
            for r in R:
                rd |= r
            if 'sc0' in mods:
                wr = R[0]
        elif op in ('buffer_wbl2', 'buffer_inv'):
            cls = 'vm'
        elif op.startswith('s_load') or op.startswith('s_memtime') or op.startswith('s_memrealtime'):
            cls = 'smem'
            wr = R[0]
            for r in R[1:]:
                rd |= r
        elif op.startswith('v_cmp'):
            cls = 'valu'
            wr = R[0]
            if op.startswith('v_cmpx'):
                wr = wr | {'exec'}
            for r in R[1:]:
                rd |= r
        elif base in ('v_swap_b32', 'v_permlane16_swap_b32', 'v_permlane32_swap_b32'):
            cls = 'valu'
            wr = R[0] | R[1]
            rd = R[0] | R[1]
        elif base in ('v_add_co_u32', 'v_sub_co_u32', 'v_addc_co_u32', 'v_subb_co_u32'):
            cls = 'valu'
            wr = R[0] | R[1]
            for r in R[2:]:
                rd |= r
        elif op.startswith('v_'):
            cls = 'valu'
            wr = R[0] if R else set()
            for r in R[1:]:
                rd |= r
            if base.startswith(RMW) or self.dpp or '_sdwa' in op:
                rd |= wr
            if base == 'v_cndmask_b32' and len(toks) == 3:
                rd |= {'vcc'}
        elif op.startswith('s_cmp') or op.startswith('s_bitcmp'):
            cls = 'salu'
            for r in R:
                rd |= r
        elif op in ('s_waitcnt', 's_barrier', 's_nop', 's_endpgm', 's_setprio', 's_sleep') or op.startswith('s_cbranch') or op == 's_branch':
            cls = 'ctl'
        elif op.startswith('s_'):
            cls = 'salu'
            wr = R[0] if R else set()
            for r in R[1:]:
                rd |= r
            if 'saveexec' in op:
                wr = wr | {'exec'}
                rd |= {'exec'}
            if op.startswith('s_addk') or op.startswith('s_mulk'):
                rd |= wr
        elif op.endswith(':'):
            cls = 'label'
        else:
            raise ValueError('unknown instruction ' + text)
        self.cls, self.rd, self.wr = cls, rd, wr


class Stream:
    def __init__(self, name=''):
        self.ins = []
        self.name = name

    def __call__(self, text, tag=None):
        for line in text.split('\n'):
            line = line.strip()
            if line and not line.startswith(';'):
                self.ins.append(Ins(line, tag))

    def raw(self, text):
        i = Ins('s_nop 0')
        i.cls = 'raw'
        i.text = text
        self.ins.append(i)

    def wait_tag(self, tag):
        i = Ins('s_nop 0')
        i.cls = 'waittag'
        i.tag = tag
        self.ins.append(i)

    def wait_regs(self, regs):
        i = Ins('s_nop 0')
        i.cls = 'waitregs'
        s = set()
        for r in regs:
            s |= regs_of(r)
        i.rd = s
        self.ins.append(i)

    def finalize(self):
        out = []
        vm = []
        lg = []
        smem = []
        hist = []
        self.n_wait = self.n_nop = 0

        def emit(i):
            out.append(i)
            st = 1
            if i.op == 's_nop':
                st = int(i.text.split()[1]) + 1
            hist.append((i, st))
            if len(hist) > 40:
                del hist[0]

        def do_wait(vmn, lgn):
            parts = []
            if vmn is not None:
                parts.append(f'vmcnt({vmn})')
                del vm[:len(vm) - vmn]
            if lgn is not None:
                parts.append(f'lgkmcnt({lgn})')
                if lgn == 0:
                    smem.clear()
                del lg[:len(lg) - lgn]
            emit(Ins('s_waitcnt ' + ' '.join(parts)))
            self.n_wait += 1

        def need_wait(touch_r, touch_w):
            t = touch_r | touch_w
            vmn = lgn = None
            for k in range(len(vm) - 1, -1, -1):
                if vm[k].wr & t:
                    vmn = len(vm) - 1 - k
                    break
            for k in range(len(lg) - 1, -1, -1):
                if lg[k].wr & t:
                    lgn = len(lg) - 1 - k
                    break
            if any(s.wr & t for s in smem):
                lgn = 0
            if lgn is not None and smem:
                lgn = 0
            if vmn is not None and vmn > 63:
                vmn = 63
            if lgn is not None and lgn > 15:
                lgn = 15
            return vmn, lgn

        def hazard(i):
            need = 0
            d = 0
            for p, st in reversed(hist):
                n = 0
                vgpr_w = {r for r in p.wr if r[0] in 'va' and r != 'vcc'}
                if p.cls == 'valu':
                    if i.cls == 'mfma' and vgpr_w & i.rd:
                        n = max(n, 2)
                    if p.op.replace('_e32', '').replace('_e64', '') in TRANS and i.cls == 'valu' and vgpr_w & i.rd:
                        n = max(n, 1)
                    sg = {r for r in p.wr if r[0] == 's' or r == 'vcc'}
                    if sg & i.rd:
                        if i.cls in ('vm', 'vmlds', 'vmst'):
                            n = max(n, 5)
                        elif i.cls == 'valu':
                            n = max(n, 4 if ('readlane' in i.op or 'writelane' in i.op) else 2)
                        elif i.cls in ('salu', 'smem'):
                            n = max(n, 2)
                    if vgpr_w & i.rd:
                        if 'readfirstlane' in i.op or 'readlane' in i.op:
                            n = max(n, 1)
                        if 'permlane' in i.op or i.dpp:
                            n = max(n, 2)
                        if ('sdwa' in p.op or 'op_sel' in p.text) and i.cls == 'valu':
                            n = max(n, 1)
                    if p.op.startswith('v_dot2') and vgpr_w & (i.rd | i.wr) and not (i.op == p.op and not vgpr_w & i.ab):
                        n = max(n, 3)
                    if 'exec' in p.wr:
                        if i.cls == 'mfma' or 'permlane' in i.op or 'readlane' in i.op or 'readfirstlane' in i.op:
                            n = max(n, 4)
                        if i.dpp:
                            n = max(n, 5)
                elif p.cls == 'mfma':
                    big = {4: 8, 8: 12}[p.passes]
                    if i.cls == 'mfma':
                        ab = i.rd - i.srcc if not (i.srcc and i.srcc == p.wr and i.passes == p.passes) else (i.rd - i.srcc)
                        if p.wr & ab:
                            n = max(n, big)
                        if p.wr & i.srcc and not (i.srcc == p.wr and i.passes == p.passes):
                            n = max(n, big - 2)
                        if p.wr & i.wr and not (i.srcc == p.wr):
                            n = max(n, big)
                    else:
                        if p.wr & (i.rd | i.wr):
                            n = max(n, big)
                        if i.cls == 'valu' and p.srcc & i.wr:
                            n = max(n, {4: 3, 8: 7}[p.passes])
                elif p.cls == 'vmst':
                    if p.wide and p.srcc & i.wr:
                        n = max(n, 2)
                elif p.cls == 'salu':
                    if 'm0' in p.wr and i.cls == 'vmlds':
                        n = max(n, 1)
                need = max(need, n - d)
                d += st
                if d >= 20:
                    break
            return need

        for i in self.ins:
            if i.cls == 'raw':
                out.append(i)
                continue
            if i.cls == 'waittag':
                idx = [k for k, o in enumerate(vm) if o.tag == i.tag]
                if idx:
                    do_wait(min(len(vm) - 1 - idx[-1], 63), None)
                continue
            if i.cls == 'waitregs':
                vmn, lgn = need_wait(i.rd, set())
                if vmn is not None or lgn is not None:
                    do_wait(vmn, lgn)
                continue
            if i.op == 's_waitcnt':
                m = re.search(r'vmcnt\((\d+)\)', i.text)
                if m:
                    del vm[:max(0, len(vm) - int(m.group(1)))]
                m = re.search(r'lgkmcnt\((\d+)\)', i.text)
                if m:
                    n = int(m.group(1))
                    if n == 0:
                        smem.clear()
                    if not smem:
                        del lg[:max(0, len(lg) - n)]
                emit(i)
                continue
            if i.cls == 'label' or i.op.startswith('s_cbranch') or i.op == 's_branch':
                pend = [o.text for o in vm + lg + smem if o.wr]
                assert not pend or i.tag == 'nocheck', f'{self.name}: pending loads at control flow {i.text}: {pend[:3]}'
                if i.cls == 'label':
                    out.append(i)
                    continue
            vmn, lgn = need_wait(i.rd, i.wr)
            if vmn is not None or lgn is not None:
                do_wait(vmn, lgn)
            n = hazard(i)
            while n > 0:
                k = min(n, 16)
                emit(Ins(f's_nop {k - 1}'))
                self.n_nop += 1
                n -= k
            emit(i)
            if i.cls in ('vm', 'vmlds', 'vmst'):
                vm.append(i)
                assert len(vm) <= 63 or True
            elif i.cls == 'lds':
                lg.append(i)
            elif i.cls == 'smem':
                smem.append(i)
        self.out = out
        return '\n'.join(('' if o.cls == 'label' else '  ') + o.text for o in out)
```

```python
from asmlib import Stream, Ins
from gen import *

NCELL = 38
WSTR = NCELL * 1024 + 32
CSL = 4 * WSTR
FFN_LDS = CSL + 4096
LOG2E = 1.4426950408889634
BIAS = 4096
KROW = 32 * 9216
KROW2 = 32 * 1152

vTMP, vTF, vTH, vK16, vA, vB, vH, vHO, vCS = 0, 1, 2, 4, 5, 6, 7, 8, 9
CNT = NCELL * 1024 - 16
vNM = [10, 12]
vC1 = [11, 13]
AFR = 16
CSB = 48
TMP = 64
VQ0 = 80
sW, sP, sX, sT = 16, 17, 18, 19
W1, W3, WH, W2, W2B, HS, CS, HXO, HXP, PT, FL = 20, 24, 28, 32, 36, 40, 44, 48, 52, 56, 60
sLW, sFULL = 64, 65
sO, sPp, sOH, sPH, sHN, sH4 = 66, 67, 68, 69, 70, 71
sT0, sT1, sT2 = 72, 73, 86
M1, M2, M3 = 74, 76, 78
sK = 80
sFO, sFP = 84, 85
sST = 88


def q(kind, r):
    return f'{kind}[{r}:{r+3}]'


def psel(dst, ev, od):
    return [f's_mul_i32 s{dst}, s{sP}, {od-ev}', f's_add_u32 s{dst}, s{dst}, {ev}']


def soff(idx):
    return ('0' if idx < 4 else f's{sK + idx // 4 - 1}'), (idx & 3) * 1024


VQ = [('v', VQ0 + 4 * i) for i in range(44)]
AQ = [('a', 144 + 4 * i) for i in range(28)]
SLOTS = {0: (0, 1, 2, 3), 1: (8, 4, 5), 2: (6, 7)}
ACC, HH, HP = {}, {}, {}
_v, _a = list(VQ), list(AQ)


def _alloc(p, vpool):
    nt = 2 * len(SLOTS[p])
    for s in range(nt // 2):
        for n in range(2):
            ACC[(p, 0, 2 * s, n)] = vpool.pop(0)
            HH[(SLOTS[p][s], n)] = ACC[(p, 0, 2 * s, n)][1]
    free = []
    for T in range(nt):
        for n in range(2):
            for u in range(2):
                if (p, u, T, n) not in ACC:
                    ACC[(p, u, T, n)] = vpool.pop(0) if vpool else _a.pop(0)
                    if ACC[(p, u, T, n)][0] == 'v':
                        free.append(ACC[(p, u, T, n)])
    return free


_free0 = _alloc(0, _v)
STG = [x[1] for x in _v]
_free1 = _alloc(1, _v)
_free2 = _alloc(2, _free0)
for _s in (0, 1, 2, 3, 8, 4, 5, 6, 7):
    for _n in range(2):
        HP[(_s, _n)] = _a.pop(0) if _a else _free0.pop(0)
vPOLL = _free0.pop(0)[1]
POOL = [x[1] for x in _free0 + _free1 + _free2]
RSL = CSL + 3328


def sizes_of(lines):
    import subprocess, re, tempfile, os
    txt = '.amdgcn_target "amdgcn-amd-amdhsa--gfx950"\n.text\n'
    for i, l in enumerate(lines):
        l = re.sub(r'(s_cbranch_\w+|s_branch) \S+', r'\1 0', l)
        txt += ''.join(x + '\n' for x in l.split('\n') if not x.strip().endswith(':') and not x.startswith('.p2')) + f'L{i}:\n'
    d = tempfile.mkdtemp()
    open(d + '/a.s', 'w').write(txt)
    subprocess.run(['clang', '-x', 'assembler', '-target', 'amdgcn-amd-amdhsa', '-mcpu=gfx950', '-c', d + '/a.s', '-o', d + '/a.o'], check=True)
    nm = subprocess.run(['llvm-objdump', '-t', d + '/a.o'], capture_output=True, text=True).stdout
    ad = {int(m.group(2)): int(m.group(1), 16) for m in re.finditer(r'^([0-9a-f]+) .* L(\d+)$', nm, re.M)}
    return [ad[i] - (ad[i - 1] if i else 0) for i in range(len(lines))]


def add_hops(out):
    HS_ = OPT['hop']
    lines = [o.text for o in out]
    sz = sizes_of(lines)
    first = next(i for i, o in enumerate(out) if 'ffn_body:' in o.text) + 1
    gap, cur = [0] * len(out), []
    for i, o in enumerate(out + [Ins('v_mfma_f32_16x16x32_bf16 v[0:3], v[0:3], v[0:3], 0')]):
        if o.cls == 'mfma':
            w = weight([out[j].text for j in cur if out[j].cls != 'label'])
            for j in cur:
                gap[j] = w
            cur = []
        else:
            cur.append(i)
    at, addr, i, line = [], 0, 0, 0
    addrs = []
    for k in range(len(out)):
        addrs.append(addr if k >= first else -1)
        addr += sz[k] if k >= first else 0
    ins = 0
    k = first
    while True:
        lo = line * HS_
        cand = [j for j in range(k, min(len(out), k + 400)) if lo <= addrs[j] + 4 * ins < lo + 64]
        if not cand:
            if addrs[-1] + 4 * ins < lo:
                break
            line += 1
            continue

        def cost(j):
            g = 0 if out[j - 1].cls == 'mfma' and out[j].cls == 'mfma' else gap[j - 1] if out[j - 1].cls != 'mfma' else gap[j]
            bad = out[j - 1].cls == 'mfma' and out[j].cls != 'mfma'
            return (((addrs[j] + 4 * ins) % 32) // 8, g >= 2, bad, g, j)
        j = min(cand, key=cost)
        g0 = j - 1 if out[j - 1].cls != 'mfma' else j
        for t in range(max(0, j - 8), min(len(out), j + 8)):
            pass
        at.append(j)
        a = j - 1
        while a >= 0 and out[a].cls != 'mfma':
            gap[a] += 1
            a -= 1
        a = j
        while a < len(out) and out[a].cls != 'mfma':
            gap[a] += 1
            a += 1
        ins += 1
        k = j
        line += 1
    n = len(at)
    qs = [n * w // 4 for w in range(5)]
    res = []
    pos = {j: h for h, j in enumerate(at)}
    for j, o in enumerate(out):
        if j in pos:
            h = pos[j]
            if h in qs[:4]:
                res.append(f'ffn_hopq{qs.index(h)}:')
            res.append(f'ffn_hop{h}:')
            res.append(f'  s_cbranch_execz {"ffn_hopret" if h + 1 in qs[1:] else f"ffn_hop{h+1}"}')
        res.append(('' if o.cls == 'label' else '  ') + o.text)
    res.append('ffn_hopret:\n  s_setpc_b64 s[90:91]')
    print(f'   {n} hops', file=sys.stderr)
    return '\n'.join(res)


def weight(ins):
    w = 0
    for x in ins:
        if isinstance(x, tuple):
            w += x[0] != 'require'
        else:
            w += 2 if x.startswith(('buffer_', 'v_exp', 'v_rcp', 'v_rsq')) else 1
    return w


def gen_ffn(P=None):
    P = dict(dict(D=7, G=4, HA=5, la0=2, k1=3, e0=20, e1=15, e2=85, d1=35, d2=48, d3=32, dl=3, erate=1.0, r2=70, rl=4, early2=1, post='0p1c',
             seq='0A 1A 0B 1B 0C 1C 0D 1D 0F 1F 0H 1H 0G 1G 0E 1E 0I 1I 2A 2B 2C 2D 2F 2H 2G 2E 2I 3A 3B 3C 3D 3F 3H 3G 3E 3I hA hB hC hD hF hH hG hE hI',
             rnd=[(0, 1, 2, 3), (4, 5, None, None), (6, 7, 8, None)], shift=1, bar=1, s1=8, s2=8, dA=30), **(P or {}))
    st = OPT['stflag']
    S = Stream('ffn')
    S('s_cmp_ge_u32 s2, 256')
    S('s_cbranch_scc1 ffn_end')
    S(f's_load_dwordx4 s[4:7], s[0:1], {A_W1}')
    S(f's_load_dwordx2 s[14:15], s[0:1], {A_WS}')
    S(f's_load_dwordx2 s[8:9], s[0:1], {A_W2}')
    if OPT['stamps']:
        S(f's_memtime s[{sST}:{sST+1}]')
        S('s_mov_b32 s92, 0')
    if OPT['hop']:
        S.raw('s_branch ffn_body\n.p2align 9\nffn_body:')
    S('v_lshrrev_b32 v16, 6, v0')
    S('v_and_b32 v17, 63, v0')
    S(f'v_readfirstlane_b32 s{sW}, v16')
    S(f's_and_b32 s{sX}, s2, 7')
    S(f's_bfe_u32 s{sP}, s2, 0x10003')
    S(f's_lshr_b32 s{sT}, s2, 4')
    S(f's_mul_i32 s{sLW}, s{sW}, {WSTR}')
    S('v_lshrrev_b32 v22, 4, v17')
    S('v_and_b32 v23, 15, v17')
    S(f's_lshl_b32 s3, s{sT}, 2')
    S(f's_add_u32 s3, s3, s{sW}')
    S('s_lshl_b32 s3, s3, 8')
    S('v_lshlrev_b32 v24, 14, v22')
    S('v_lshl_add_u32 v24, v23, 4, v24')
    S(f'v_add_u32 v{vHO}, s3, v24')
    S('v_bfe_u32 v18, v17, 3, 1')
    S('v_lshl_add_u32 v18, v22, 3, v18')
    S(f's_lshl_b32 s3, s{sW}, 1')
    S('v_add_u32 v18, s3, v18')
    S('v_and_b32 v19, 7, v17')
    S('v_lshlrev_b32 v19, 4, v19')
    S(f'v_add_u32 v19, {BIAS}, v19')
    S('v_mul_u32_u24 v20, 9216, v18')
    S(f'v_add_u32 v{vA}, v19, v20')
    S(f'v_add_u32 v{vB}, {128-2048}, v{vA}')
    S('v_and_b32 v19, 3, v17')
    S(f's_mul_i32 s{sFULL}, s{sX}, 1152')
    S(f's_mul_i32 s3, s{sP}, {576+64}')
    S(f's_add_u32 s{sFULL}, s{sFULL}, s3')
    S('s_waitcnt lgkmcnt(0)')
    srd(S, HS, 14, WS_H, NB_X)

    def wsrd(X, d, lo, off, nb):
        X(f's_sub_u32 s{d}, s{lo}, {off}')
        X(f's_subb_u32 s{d+1}, s{lo+1}, 0')
        X(f's_mov_b32 s{d+2}, {nb+off}')
        X(f's_mov_b32 s{d+3}, 0x20000')

    groups, stages = [], []
    cell = [0]

    def ld(v, srdn, so, t):
        return f'buffer_load_dwordx4 v{v}, s[{srdn}:{srdn+3}], s{so} offen offset:{1024*t} lds'

    def group(pre, loads):
        if cell[0] + len(loads) > NCELL:
            cell[0] = 0
        c = cell[0]
        cell[0] += len(loads)
        ins = [[x] for x in pre] + [[f's_add_u32 m0, s{sLW}, {c*1024}']] + [[ld(v, r, so, t)] for t, (v, r, so) in enumerate(loads)]
        groups.append(dict(ins=ins, cells=range(c, c + len(loads)), stage=len(stages)))
        return c

    def ffr(c, tiles, mk):
        return [dict(a=vTF, off=1024 * c + 32 * i, mf=mk(T)) for i, T in enumerate(tiles)]

    def hfr(c, upper, tiles, mk):
        return [dict(a=vTH + upper, off=1024 * c + 32 * i, mf=mk(T)) for i, T in enumerate(tiles)]

    def hreg(kk, n):
        return ('a', (kk * 2 + n) * 4)

    def mk1(p, up, kk):
        return lambda T: [(ACC[(p, up, T, n)], hreg(kk, n), kk == 0, f'h{kk}' if p == 0 else None) for n in range(2)]

    def stats(kk):
        ex = []
        for n in range(2):
            hb = q(*hreg(kk, n))
            for gram in range(2):
                dq = q('v', CSB + 8 * n + 4 * gram)
                ex.append(f'v_mfma_f32_16x16x32_bf16 {dq}, {hb if gram else q("v", TMP)}, {hb}, {"0" if kk == 0 else dq}')
        return ex

    def so1(c):
        return f's_add_u32 s{sT0}, s{sFULL}, {c}'
    fr = []
    for kk in range(18):
        c = group([so1(kk * KROW)], [(vA, W1, sT0), (vA, W3, sT0), (vB, W1, sT0), (vB, W3, sT0)])
        fr += (ffr(c, range(4), mk1(0, 0, kk)) + ffr(c + 1, range(4), mk1(0, 1, kk)) +
               ffr(c + 2, range(4, 8), mk1(0, 0, kk)) + ffr(c + 3, range(4, 8), mk1(0, 1, kk)))
        ex = stats(kk)
        for i in range(4):
            fr[-1 - 4 * i]['extra'] = [ex[i]]
        if kk % 2 == 1 or kk == 0:
            stages.append(fr)
            fr = []
    n_st0 = len(stages)
    for kk in range(18):
        c = group([so1(kk * KROW + 256)], [(vA, W1, sT0), (vA, W3, sT0), (vH, WH, sT0)])
        fr += (ffr(c, range(2, 6), mk1(1, 0, kk)) + ffr(c + 1, range(2, 6), mk1(1, 1, kk)) +
               hfr(c + 2, 0, (0, 1), mk1(1, 0, kk)) + hfr(c + 2, 1, (0, 1), mk1(1, 1, kk)))
        if kk % P['k1'] == P['k1'] - 1:
            stages.append(fr)
            fr = []
    n_st1 = len(stages)
    for kk in range(0, 18, 2):
        c = group(([f'v_add_u32 v{vB}, {KROW-2048}, v{vA}'] if kk == 0 else []) + [so1(kk * KROW + 384)],
                  [(vA, W1, sT0), (vA, W3, sT0), (vB, W1, sT0), (vB, W3, sT0)])
        fr += (ffr(c, range(4), mk1(2, 0, kk)) + ffr(c + 1, range(4), mk1(2, 1, kk)) +
               ffr(c + 2, range(4), mk1(2, 0, kk + 1)) + ffr(c + 3, range(4), mk1(2, 1, kk + 1)))
        if kk % 4 == 2 or kk == 16:
            stages.append(fr)
            fr = []
    n_st2 = len(stages)

    def own(s):
        return (sO, s, lambda n: ('v', HH[(s, n)]), f'hh{s}') if s < 8 else (sOH, 0, lambda n: ('v', HH[(8, n)]), 'hh8')

    def par(s):
        return (sPp, s, lambda n: HP[(s, n)], f'hp{s}') if s < 8 else (sPH, 0, lambda n: HP[(8, n)], 'hp8')

    started = set()

    def mk2(k):
        def f(T):
            r = [(('a', (T * 2 + n) * 4), k[2](n), T not in started, f'{k[3]}_{n}') for n in range(2)]
            started.add(T)
            return r
        return f

    def hp_group(ka, h4):
        pre = [f's_add_u32 s{sT1}, s{ka[0]}, {ka[1]*KROW2}', f's_add_u32 s{sT1}, s{sT1}, s{sHN}'] if h4 is None else []
        return group(pre, [(vH, W2, sT1 if h4 is None else h4)])

    pairs = dict(A=(own(0), own(1), None), B=(own(2), own(3), None), C=(par(0), par(1), None), D=(par(2), par(3), None),
                 E=(own(8), par(8), sH4), F=(own(4), own(5), None), G=(par(4), par(5), None), H=(own(6), own(7), None), I=(par(6), par(7), None))
    seq = [(u[0] if u[0] == 'h' else int(u[0]), u[1]) for u in P['seq'].split()]
    assert sorted(map(str, seq)) == sorted(str((L, k)) for L in (0, 1, 2, 3, 'h') for k in 'ABCDEFGHI')
    lastu = {L: j for j, (L, k) in enumerate(seq)}
    fr, cnt = [], 0
    for j, (L, k) in enumerate(seq):
        ka, kb, h4 = pairs[k]
        pre = [f'v_mov_b32 v{vA}, v14', f'v_mov_b32 v{vH}, v15', f'v_add_u32 v{vB}, {KROW2-1024}, v14'] if j == 0 else []
        if L == 'h':
            c = hp_group(ka, h4)
            fr += hfr(c, 0, (16, 17), mk2(ka)) + hfr(c, 1, (16, 17), mk2(kb))
            if j == lastu[L]:
                fr[-1]['fin'] = 8
            cnt += 1
        else:
            if h4 is None:
                c = group(pre + [f's_add_u32 s{sT0}, s{ka[0]}, {ka[1]*KROW2+128*L}'], [(vA, W2, sT0), (vB, W2, sT0)])
                c2 = c + 1
            else:
                c = group([f's_add_u32 s{sT0}, s{ka[0]}, {128*L}'], [(vA, W2, sT0)])
                c2 = group([f's_add_u32 s{sT0}, s{kb[0]}, {128*L}'], [(vA, W2, sT0)])
            a, b = ffr(c, range(4 * L, 4 * L + 4), mk2(ka)), ffr(c2, range(4 * L, 4 * L + 4), mk2(kb))
            if j == lastu[L]:
                fr += [a[0], a[1], b[0], b[1], a[2], a[3], b[2], b[3]]
                fr[-5]['fin'] = 2 * L
                fr[-1]['fin'] = 2 * L + 1
            else:
                fr += a + b
            cnt += 2
        if cnt >= 8:
            stages.append(fr)
            fr, cnt = [], 0
    if fr:
        if cnt <= 2:
            stages[-1] += fr
            for g in groups:
                g['stage'] = min(g['stage'], len(stages) - 1)
        else:
            stages.append(fr)
    NSTG = len(stages)

    def hload(kk):
        L = []
        for hh in range(2):
            r = STG[(2 * kk + hh) % len(STG)]
            L.append([f's_mov_b32 s{sT1}, {(8*kk+4*hh)*16384}', f'buffer_load_dwordx4 {q("v", r)}, v{vHO}, s[{HS}:{HS+3}], s{sT1} offen'])
        return L

    def hmove(kk):
        L = []
        for hh in range(2):
            r = STG[(2 * kk + hh) % len(STG)]
            for n in range(2):
                for i in range(2):
                    L.append(f'v_accvgpr_write_b32 a{(kk*2+n)*4+2*hh+i}, v{r+2*n+i}')
        return L

    def emit_groups(grps, tag=None):
        for grp in grps:
            for x in grp:
                S(x, tag)
    emit_groups(hload(0))
    wsrd(S, W1, 4, BIAS, NB_W)
    wsrd(S, W3, 6, BIAS + 1024, NB_W)
    emit_groups(groups[0]['ins'], 'dma0')
    emit_groups(hload(1))
    emit_groups(groups[1]['ins'], 'dma1')
    emit_groups(hload(2))
    emit_groups(hload(3))
    HPRE = 4
    S('v_bfe_u32 v20, v17, 3, 2')
    S(f'v_mul_u32_u24 v20, {WSTR}, v20')
    S('v_lshrrev_b32 v21, 5, v17')
    S('v_lshlrev_b32 v21, 8, v21')
    S('v_lshl_add_u32 v21, v19, 3, v21')
    S('v_add_u32 v20, v20, v21')
    S('v_bfe_u32 v27, v17, 2, 1')
    S(f'v_lshl_add_u32 v{vTF}, v27, 7, v20')
    S(f'v_mov_b32 v{vK16}, 16')
    S(f'v_mov_b32 v{vTMP}, 0')
    S(f'ds_write_b32 v{vK16}, v{vTMP} offset:{CNT}')
    for i in range(4):
        S(f'v_mov_b32 v{TMP+i}, 0x3f803f80')
    S(f'v_mov_b32 v{TMP+4}, v17')
    S(f'v_mov_b32 v{TMP+5}, v18')
    S(f'v_mov_b32 v{TMP+6}, v21')
    for x in hmove(0):
        S(x)
    S('s_waitcnt lgkmcnt(0)')

    it = []
    rel = [0]

    def I(x, w=None, tag=None, prov=None):
        x = x if isinstance(x, list) else [x]
        it.append(dict(ins=x, w=w or weight(x), tag=tag, prov=prov, rel=rel[0], dl=None))

    def Isrd(d, lo, off, nb, sub=False):
        U = Stream()
        (wsrd if sub else srd)(U, d, lo, off, nb)
        t = [x.text for x in U.ins]
        I(t[:2])
        I(t[2])
        I(t[3])
    ln, t1 = TMP + 4, TMP + 7
    Isrd(CS, 14, WS_CS, 2 * F_ * 4)
    I(f's_lshr_b32 s10, s{sW}, 1')
    I(f's_mul_i32 s10, s10, {F_*4}')
    I(f's_and_b32 s11, s{sW}, 1')
    I('s_lshl_b32 s11, s11, 10')
    I('s_add_u32 s10, s10, s11')
    I(f's_lshl_b32 s11, s{sX}, 1')
    I(f's_add_u32 s11, s11, s{sP}')
    I('s_mul_i32 s11, s11, 1152')
    I('s_add_u32 s10, s10, s11')
    I(f'v_lshlrev_b32 v{TMP+8}, 4, v{ln}')
    I(f's_lshl_b32 s11, s{sW}, 10', prov='csready')
    groups[12]['ins'] += [[('require', 'csready'), f's_add_u32 m0, s11, {CSL}'], [f'buffer_load_dwordx4 v{TMP+8}, s[{CS}:{CS+3}], s10 offen lds']]
    I(f'v_mul_u32_u24 v{t1}, 8064, v{TMP+5}')
    I(f'v_sub_u32 v14, v{vA}, v{t1}')
    I(f'v_bfe_u32 v{t1}, v{ln}, 4, 1')
    I(f'v_mul_u32_u24 v{t1}, {WSTR}, v{t1}')
    I(f'v_add_u32 v{t1}, v{t1}, v{TMP+6}')
    I(f'v_bfe_u32 v{vTH}, v{ln}, 2, 2')
    I(f'v_lshl_add_u32 v{vTH}, v{vTH}, 6, v{t1}')
    I(f'v_add_u32 v{vTH+1}, {2*WSTR}, v{vTH}')
    I(f'v_bfe_u32 v{t1}, v{ln}, 2, 2')
    I(f'v_lshrrev_b32 v{TMP+6}, 4, v{ln}')
    I(f'v_lshl_add_u32 v{t1}, v{TMP+6}, 3, v{t1}')
    I(f's_and_b32 s3, s{sW}, 1')
    I('s_lshl_b32 s3, s3, 2')
    I(f'v_add_u32 v{TMP+6}, s3, v{t1}')
    I(f'v_and_b32 v{t1}, 3, v{ln}')
    I(f'v_mul_u32_u24 v{vH}, 9216, v{TMP+6}')
    I(f'v_lshl_add_u32 v{vH}, v{t1}, 4, v{vH}')
    for x in psel(3, BIAS + 512 - 256 - 2048, BIAS - 64 - 256 - 2048):
        I(x)
    I(f'v_add_u32 v{vH}, s3, v{vH}')
    I(f'v_mul_u32_u24 v15, 1152, v{TMP+6}')
    I(f'v_lshl_add_u32 v15, v{t1}, 4, v15')
    I(f'v_add_u32 v15, {BIAS}, v15')
    I([f's_cmp_lt_u32 s{sW}, 2', f's_cselect_b32 s{WH}, s4, s6', f's_cselect_b32 s{WH+1}, s5, s7'])
    Isrd(WH, WH, BIAS, NB_W, True)
    it[-1]['prov'] = 'halfready'
    groups[18]['ins'][0] = [('require', 'halfready')] + groups[18]['ins'][0]
    for i, mreg in enumerate((M1, M2, M3)):
        I(f'v_cmp_eq_u32 s[{mreg}:{mreg+1}], {i+1}, v{t1}')
    I(f'v_lshrrev_b32 v{t1}, 4, v{ln}')
    I(f'v_lshlrev_b32 v{vCS}, 4, v{t1}')
    for x in psel(3, CSL, CSL + 128):
        I(x)
    I(f'v_add_u32 v{vCS}, s3, v{vCS}')
    Isrd(W2, 8, BIAS, NB_W, True)
    for i in range(4):
        I(f's_mov_b32 s{sK+i}, {4096*(i+1)}')
    I(f's_mul_i32 s3, s{sX}, {576*1152}')
    for reg, e, o in ((sO, 0, 288 + 32), (sPp, 288 + 32, 0), (sOH, 256, 288), (sPH, 288, 256)):
        for x in psel(reg, e * 1152, o * 1152 + 640):
            I(x)
        I(f's_add_u32 s{reg}, s{reg}, s3')
    for x in psel(sT2, 512, -64):
        I(x)
    I([f's_cmp_lt_u32 s{sW}, 2', f's_cselect_b32 s{sH4}, s{sOH}, s{sPH}', f's_cselect_b32 s{sHN}, 0, {KROW2}'])
    I(f's_add_u32 s{sH4}, s{sH4}, s{sT2}')
    I(f's_add_u32 s{sHN}, s{sHN}, s{sT2}')
    I('s_lshl_b32 s3, s2, 2')
    I(f's_add_u32 s3, s3, s{sW}')
    I(f's_lshl_b32 s{sFO}, s3, 6')
    I(f's_mul_i32 s{sT2}, s3, 18432')
    I(f's_add_u32 s{sT2}, s{sT2}, {WS_HHX}')
    Isrd(HXO, 14, f's{sT2}', 18432)
    I('s_xor_b32 s3, s3, 32')
    I(f's_lshl_b32 s{sFP}, s3, 6')
    I(f's_mul_i32 s{sT2}, s3, 18432')
    I(f's_add_u32 s{sT2}, s{sT2}, {WS_HHX}')
    Isrd(HXP, 14, f's{sT2}', 18432)
    I('s_lshr_b32 s3, s2, 3')
    I('s_lshl_b32 s3, s3, 2')
    I(f's_add_u32 s3, s3, s{sW}')
    I('s_mul_i32 s3, s3, 18432')
    I(f's_mul_i32 s{sT2}, s{sX}, {NB_X}')
    I(f's_add_u32 s3, s3, s{sT2}')
    I(f's_add_u32 s3, s3, {WS_PART}')
    Isrd(PT, 14, 's3', 18432)
    Isrd(FL, 14, WS_FLG, 65536)

    frags, mf, stage_pos = [], [], []
    fin_pos, kpos = {}, {}
    for k, stg in enumerate(stages):
        stage_pos.append(len(mf))
        for j, f in enumerate(stg):
            f['stage'] = k
            f['first'] = j == 0
            fi = len(frags)
            frags.append(f)
            for n, (acc, B, first, tok) in enumerate(f['mf']):
                ar = AFR + 4 * (fi % 8)
                if tok and tok not in kpos:
                    kpos[tok] = len(mf)
                mf.append(dict(text=f'v_mfma_f32_16x16x32_bf16 {q(*acc)}, {q("v", ar)}, {q(*B)}, {"0" if first else q(*acc)}',
                               frag=fi, n=n, tok=tok))
            if 'fin' in f:
                fin_pos[f['fin']] = len(mf) - 1
            for x in f.get('extra', []):
                mf.append(dict(text=x, frag=None, n=0, tok=None))
    NM = len(mf)
    p1, p2, pC = stage_pos[n_st0], stage_pos[n_st1], stage_pos[n_st2]
    it[-1]['dl'] = p1 - 60
    D, G = P['D'], P['G']

    used = [0] * (NM + 1)
    reads = [[] for _ in range(NM + 1)]
    pinned = set()
    bar_at = {0: -1}
    for pos, m in enumerate(mf):
        fi = m['frag']
        if fi is not None and fi + D < len(frags):
            used[pos] += 1
            reads[pos].append((fi + D, m['n']))
            if m['n'] == 0 and frags[fi + D]['first']:
                bar_at[frags[fi + D]['stage']] = pos
        if pos and fi is not None and m['n'] == 0 and fi % G == 0:
            used[pos - 1] += 1
    side = [[] for _ in range(NM + 1)]
    gpre = [[] for _ in range(NM + 1)]

    def room2(p):
        if used[p] == 0:
            return True
        if used[p] == 1 and len(reads[p]) == 1 and p + 1 < NM and used[p + 1] <= 1 and not gpre[p] and not gpre[p + 1] and not side[p + 1] and P['shift']:
            reads[p + 1].insert(0, reads[p].pop())
            used[p] -= 1
            used[p + 1] += 1
            return True
        return False

    def place(target, ins, tag=None, provide=None, w=None, slack=6):
        target = max(0, min(int(target), NM))
        w = w or weight(ins)
        rng = range(target, min(target + slack, NM))
        pos = None
        if w >= 2:
            pos = next((p for p in rng if room2(p)), None)
        if pos is None:
            pos = next((p for p in rng if used[p] + 1 <= 2), target)
        used[pos] += w
        side[pos].append((ins, tag, provide))
        return pos

    slow = []
    sig_at = {}
    for k in range(1, NSTG):
        b = bar_at[k]
        if k < 2 or P['bar']:
            gpre[b] = [('waittag', f'dma{k}'), 's_barrier'] if not P.get('nobar') else []
            used[b] += 2
            sig_at[k] = b
            continue
        gpre[b] = [f'v_cmp_gt_u32 vcc, {64*(k-1)}, v{vTMP}', ('raw', f's_cbranch_vccnz ffn_sw{k}\nffn_sb{k}:')]
        used[b] += 2
        slow.append(f"""ffn_sw{k}:
  {'s_add_u32 s92, s92, 256' if OPT['stamps'] else ''}
  s_mov_b32 s87, 0x400000
ffn_ss{k}:
  ds_read_b32 v{vTMP}, v{vK16} offset:{CNT}
  s_sub_u32 s87, s87, 1
  s_cbranch_scc1 ffn_sb{k}
  s_waitcnt lgkmcnt(0)
  v_cmp_gt_u32 vcc, {64*(k-1)}, v{vTMP}
  s_cbranch_vccnz ffn_ss{k}
  s_branch ffn_sb{k}""")
        sig_at[k] = place(b - P['s2'] - P['s1'], [('waittag', f'dma{k}'), 's_mov_b64 exec, 1', f'ds_add_u32 v{vK16}, v{vK16} offset:{CNT}', 's_mov_b64 exec, -1'], slack=3)
        assert sig_at[k] > stage_pos[k - 1] + 1 and sig_at[k] > bar_at[k - 1]
        pr = place(b - P['s2'], [f'ds_read_b32 v{vTMP}, v{vK16} offset:{CNT}'], slack=3)
        assert sig_at[k] < pr < b

    last = {}
    for g in groups[:2]:
        for c in g['cells']:
            last[c] = g['stage']
    gi = 2
    cur = 0
    for k in range(NSTG):
        todo = []
        while gi < len(groups) and all(last.get(c, -9) <= k - 2 for c in groups[gi]['cells']) and \
                (k >= n_st0 - 2 or groups[gi]['stage'] <= k + P['la0']):
            todo.append(groups[gi])
            for c in groups[gi]['cells']:
                last[c] = groups[gi]['stage']
            gi += 1
        flat = [(x, g) for g in todo for x in g['ins']]
        a, b = bar_at[k] + 1, (bar_at[k + 1] if k + 1 < NSTG else NM) - 2
        for i, (x, g) in enumerate(flat):
            cur = place(max(cur, a + (b - a) * i / len(flat)), x, f'dma{g["stage"]}') + 1
            assert cur <= sig_at[g['stage']], (k, g['stage'])
    assert gi == len(groups)
    cur = 0
    for kk in range(HPRE, 18):
        p = kpos[f'h{kk - P["HA"]}'] if kk > P['HA'] else 1 + 5 * (kk - HPRE)
        for grp in hload(kk):
            cur = place(max(p, cur), grp) + 1
    place(max(cur, p1 - 20), [f'v_lshlrev_b32 v{vHO}, 4, v{ln}'])
    for kk in range(1, 18):
        mv = hmove(kk)
        cur = kpos[f'h{kk}'] - 24
        for i, x in enumerate(mv):
            pre = [('waitregs', [q('v', STG[(2 * kk + h) % len(STG)]) for h in range(2)])] if i == 0 else []
            cur = place(cur, pre + [x], provide=f'h{kk}' if i == len(mv) - 1 else None, slack=3) + 1
        assert cur < kpos[f'h{kk}']

    rel[0] = p1 + 8
    t0 = TMP
    I(f'v_and_b32 v{t0}, 15, v{ln}')
    I(f'v_lshrrev_b32 v{t0+1}, 2, v{t0}')
    I(f'v_lshl_add_u32 v{t0+1}, v{t0+1}, 4, v{t0}')
    I(f'v_lshlrev_b32 v{t0+1}, 2, v{t0+1}')
    for n in range(2):
        gq = CSB + 8 * n + 4
        for i, mreg in enumerate((M1, M2, M3)):
            I(f'v_cndmask_b32 v{gq}, v{gq}, v{gq+i+1}, s[{mreg}:{mreg+1}]')
        I(f'ds_bpermute_b32 v{gq}, v{t0+1}, v{gq}')
    if not OPT['fuse']:
        I([f's_add_u32 s{CS}, s14, {WS_RS}', f's_addc_u32 s{CS+1}, s15, 0'])
        I(['s_and_b32 s3, s2, 15', 's_cmp_eq_u32 s3, 0', f's_cselect_b32 s{CS+2}, {S_*4}, 0'])
        I(f's_lshl_b32 s{sT2}, s{sT}, 2')
        I(f's_add_u32 s{sT2}, s{sT2}, s{sW}')
        I(f's_lshl_b32 s{sT2}, s{sT2}, 7')
    else:
        I(f's_lshl_b32 s{sT2}, s{sW}, 7')
        I(f's_add_u32 s{sT2}, s{sT2}, {RSL}')
    I(f'v_lshlrev_b32 v{t0}, 3, v{t0}')
    for n in range(2):
        I(f'v_mul_f32 v{vNM[n]}, {-1.0/576!r}, v{CSB+8*n}')
        I(f'v_mov_b32 v{t0+2+n}, 0x3727c5ac')
    for n in range(2):
        gq, t = CSB + 8 * n + 4, t0 + 2 + n
        I(f'v_fmac_f32 v{t}, {1.0/576!r}, v{gq}')
        I(f'v_fma_f32 v{t}, -v{vNM[n]}, v{vNM[n]}, v{t}')
        I(f'v_max_f32 v{t}, 0x3727c5ac, v{t}')
        I(f'v_rsq_f32 v{t}, v{t}', 2)
    ncs = [0]

    def cs_read(off):
        b = ncs[0] & 1
        ncs[0] += 1
        I(f'ds_read_b128 {q("v", CSB+8*b)}, v{vCS} offset:{off}')
        I(f'ds_read_b128 {q("v", CSB+8*b+4)}, v{vCS} offset:{off+2048}')
    cs_read(0)
    for n in range(2):
        t = t0 + 2 + n
        I(f'v_mul_f32 v{vC1[n]}, {-LOG2E!r}, v{t}')
        I(f'v_mul_f32 v{t}, v{t}, v{t}')
    if not OPT['fuse']:
        I(f'buffer_store_dwordx2 v[{t0+2}:{t0+3}], v{t0}, s[{CS}:{CS+3}], s{sT2} offen {st}')
    else:
        I(f'v_add_u32 v{t0}, s{sT2}, v{t0}')
        I(f'ds_write_b64 v{t0}, v[{t0+2}:{t0+3}]')

    def silu(p, T, n, buf, slot):
        (gk, g), (uk, u) = ACC[(p, 0, T, n)], ACC[(p, 1, T, n)]
        e = TMP + 8 + 4 * (n & 1)
        if gk == 'a':
            for r in range(4):
                I(f'v_accvgpr_read_b32 v{TMP+r}, a{g+r}')
            g = TMP
        if uk == 'a':
            for r in range(4):
                I(f'v_accvgpr_read_b32 v{TMP+4+r}, a{u+r}')
            u = TMP + 4
        for r in range(4):
            I(f'v_fmac_f32 v{g+r}, v{vNM[n]}, v{CSB+8*buf+r}')
        for r in range(4):
            I(f'v_mul_f32 v{e+r}, v{vC1[n]}, v{g+r}')
        for r in range(4):
            I(f'v_exp_f32 v{e+r}, v{e+r}', 2)
            I(f'v_fmac_f32 v{u+r}, v{vNM[n]}, v{CSB+8*buf+4+r}')
        for r in range(4):
            I(f'v_add_f32 v{e+r}, 1.0, v{e+r}')
        for r in range(4):
            I(f'v_rcp_f32 v{e+r}, v{e+r}', 2)
            I(f'v_mul_f32 v{u+r}, v{g+r}, v{u+r}')
        for r in range(4):
            I(f'v_mul_f32 v{u+r}, v{u+r}, v{e+r}')
        dst = HH[(slot, n)] + 2 * (T & 1)
        I(f'v_cvt_pk_bf16_f32 v{dst}, v{u}, v{u+1}')
        I(f'v_cvt_pk_bf16_f32 v{dst+1}, v{u+2}, v{u+3}', prov=f'hh{slot}_{n}' if T & 1 else None)
        if T & 1:
            it[-1]['dl'] = kpos[f'hh{slot}_{n}'] - 3
            so, im = soff(slot * 2 + n)
            I(f'buffer_store_dwordx4 {q("v", HH[(slot, n)])}, v{vHO}, s[{HXO}:{HXO+3}], {so} offen offset:{im} sc1', tag=f'hx{p}')

    tiles = [(p, T, SLOTS[p][T // 2]) for p in range(3) for T in range(2 * len(SLOTS[p]))]
    ends = {0: p2 + P['e0'], 1: pC + P['e1'], 2: pC + P['e2']}
    starts = {0: p1 + 8, 1: p2 + 8, 2: pC + 8}
    for i, (p, T, s) in enumerate(tiles):
        if i + 1 < len(tiles):
            p_, T_, s_ = tiles[i + 1]
            if s_ == 8 and T_ == 0:
                for x in psel(sT2, 0, -128 - 1024):
                    I(x)
                I(f'v_add_u32 v{vCS}, s{sT2}, v{vCS}')
            if s == 8 and s_ != 8:
                I(f'v_subrev_u32 v{vCS}, s{sT2}, v{vCS}')
            cs_read(64 * (2 * s_ + (T_ & 1)))
        rel[0] = starts[p]
        for n in range(2):
            silu(p, T, n, i & 1, s)
            if p == 0 and {ACC[(0, 0, T, n)], ACC[(0, 1, T, n)]} & {v for k_, v in ACC.items() if k_[0] == 2}:
                it[-1]['dl'] = min(it[-1]['dl'] or NM, p2 - 4)
        if i + 1 == len(tiles) or tiles[i + 1][0] != p:
            it[-1]['dl'] = min(it[-1]['dl'] or NM, ends[p])
    lastchk = 0
    for p in range(3):
        off = 4 * p
        pf = place(ends[p] + P['d1'], [('waittag', f'hx{p}'), f'buffer_store_dword v{vA}, off, s[{FL}:{FL+3}], s{sFO} offset:{off} sc1'])
        assert pf + P['d2'] > lastchk
        pp = place(pf + P['d2'], [f'buffer_load_dword v{vPOLL}, off, s[{FL}:{FL+3}], s{sFP} offset:{off} sc1'])
        pc = place(pp + P['d3'], [f'v_readfirstlane_b32 s77, v{vPOLL}'], w=2)
        pc = place(pc + 1, [f's_cmp_lg_u32 s77, 0', ('raw', f's_cbranch_scc0 ffn_slow{p}\nffn_back{p}:')])
        lastchk = pc
        slow.append(f"""ffn_slow{p}:
  {'s_add_u32 s92, s92, 1' if OPT['stamps'] else ''}
  s_mov_b32 s87, 0x40000
ffn_spin{p}:
  buffer_load_dword v{vPOLL}, off, s[{FL}:{FL+3}], s{sFP} offset:{off} sc1
  s_waitcnt vmcnt(0)
  v_readfirstlane_b32 s77, v{vPOLL}
  s_sub_u32 s87, s87, 1
  s_cbranch_scc1 ffn_back{p}
  s_nop 1
  s_cmp_lg_u32 s77, 0
  s_cbranch_scc0 ffn_spin{p}
  s_branch ffn_back{p}""")
        for s in sorted(SLOTS[p], key=lambda s: kpos[f'hp{s}_0']):
            for n in range(2):
                so, im = soff(s * 2 + n)
                pc = place(pc + P['dl'], [f'buffer_load_dwordx4 {q(*HP[(s, n)])}, v{vHO}, s[{HXP}:{HXP+3}], {so} offen offset:{im} sc1'], provide=f'hp{s}_{n}')
            print(f'   partner slot {s}: loaded at {pc-pC}, used at {kpos[f"hp{s}_0"]-pC}', file=sys.stderr)
    RND = P['rnd']
    GRP = {x: r for r in range(3) for x in RND[r] if x is not None}
    RQ = [POOL[0:9], POOL[9:18], POOL[0:9]]
    vPA, vHR, vR2, vOU = POOL[18], POOL[18] + 1, POOL[18] + 2, POOL[18] + 3
    vPL = [POOL[19], POOL[19] + 1, POOL[19] + 2]
    vOR = [POOL[20], POOL[20] + 1, POOL[20] + 2]
    vSL, vSH, vPB = POOL[21], POOL[21] + 1, POOL[21] + 2
    PR, OU = W3, WH
    sC = [74, 75, 76]
    sNB = [20, 21, 22, 23, 44, 45, 46]
    sPB = 47
    if OPT['fuse']:
        rel[0] = ends[2] + 2
        t = TMP
        I(f's_load_dwordx2 s[{OU}:{OU+1}], s[0:1], {A_OUT}')
        I(f'v_lshrrev_b32 v{t}, 4, v{vHO}')
        I(f's_lshr_b32 s3, s{sX}, 1')
        I(f'v_and_b32 v{vPA}, 7, v{t}')
        I(f's_and_b32 s{sT2}, s2, 0xf8')
        I(f'v_or_b32 v{vPA}, s{sT2}, v{vPA}')
        I(f'v_lshl_add_u32 v{vPA}, v{vPA}, 2, s3')
        I(f'v_lshlrev_b32 v{vPA}, 6, v{vPA}')
        I(f's_lshl_b32 s3, s3, 5')
        I(f's_and_b32 s{sT2}, s{sX}, 1')
        I(f's_add_u32 s3, s3, s{sT2}')
        I(f'v_and_b32 v{t+1}, 15, v{t}')
        I(f'v_lshl_add_u32 v{t+1}, v{t+1}, 1, s3')
        I(f'v_lshlrev_b32 v{vR2}, 2, v{t+1}')
        I(f'v_add_u32 v{vR2}, {RSL}, v{vR2}')
        I(f'ds_read_b32 v{vR2}, v{vR2}')
        I(f's_lshl_b32 s3, s{sT}, 7')
        I(f'v_add_u32 v{t+1}, s3, v{t+1}')
        I(f'v_lshrrev_b32 v{t}, 4, v{t}')
        I(f'v_lshlrev_b32 v{vHR}, 14, v{t}')
        I(f'v_lshl_add_u32 v{vHR}, v{t+1}, 3, v{vHR}')
        I(f'v_mul_u32_u24 v{vOU}, 1152, v{t+1}')
        I(f'v_and_b32 v{t+1}, 1, v{t}')
        I(f'v_lshl_add_u32 v{vOU}, v{t+1}, 5, v{vOU}')
        I(f'v_lshrrev_b32 v{t}, 1, v{t}')
        I(f'v_lshl_add_u32 v{vOU}, v{t}, 4, v{vOU}')
        I(f's_mov_b32 s{OU+2}, {NB_X}')
        I(f's_mov_b32 s{OU+3}, 0x20000')
        I(f's_lshr_b32 s3, s2, 3')
        I(f's_lshl_b32 s3, s3, 3')
        I(f's_add_u32 s3, s3, s{sX}')
        I(f's_mul_i32 s3, s3, 9216')
        I(f's_add_u32 s3, s3, {WS_PART}')
        I([f's_add_u32 s{PR}, s14, s3', f's_addc_u32 s{PR+1}, s15, 0'])
        I(f's_mov_b32 s{PR+2}, {7*NB_X+9216}')
        I(f's_mov_b32 s{PR+3}, 0x20000')
        for i in range(7):
            I(f's_mov_b32 s{sNB[i]}, {(i+1)*NB_X}')
        for r in range(3):
            code = sum((x if x is not None else 15) << (4 * w) for w, x in enumerate(RND[r]))
            I(f's_lshl_b32 s3, s{sW}, 2')
            I(f's_lshr_b32 s3, {code}, s3')
            I(f's_and_b32 s3, s3, 15')
            I([f's_cmp_eq_u32 s3, 15', f's_cselect_b32 s{sT2}, 0x80000000, 0', f's_cselect_b32 s3, 0, s3'])
            I(f'v_or_b32 v{vOR[r]}, s{sT2}, v{vOU}')
            I(f's_lshl_b32 s{sC[r]}, s3, 10')
            I(f's_or_b32 s{sT2}, s{sT2}, s{sC[r]}')
            I(f'v_add_u32 v{vPL[r]}, s{sT2}, v{vHO}')
            I(f's_lshl_b32 s{sC[r]}, s3, 5')
            I([f's_cmp_eq_u32 s3, 8', f's_cselect_b32 s3, 32, 0x140'])
            I(f's_mul_i32 s3, s3, s{sP}')
            I(f's_add_u32 s{sC[r]}, s{sC[r]}, s3')
        I(f'v_mov_b32 v{vSL}, 0x3f80')
        I(f'v_mov_b32 v{vSH}, 0x3f800000', prov='redready')
        it[-1]['dl'] = min(fin_pos.values()) + 4
        assert it[-1]['dl'] > rel[0] + 10, (it[-1]['dl'] - pC, rel[0] - pC)
    gend = {}
    for Pp, fp in sorted(fin_pos.items(), key=lambda x: x[1]):
        rel[0] = fp + 5
        for n in range(2):
            t = CSB + 16 * n
            for h in range(2):
                for r in range(4):
                    I(f'v_accvgpr_read_b32 v{t+4*h+r}, a{((2*Pp+h)*2+n)*4+r}')
            o = t + 8 + 4 * (Pp & 1)
            for i in range(4):
                I(f'v_cvt_pk_bf16_f32 v{o+i}, v{t+2*i}, v{t+2*i+1}')
            so, im = soff(n * 9 + Pp)
            I(f'buffer_store_dwordx4 {q("v", o)}, v{vHO}, s[{PT}:{PT+3}], {so} offen offset:{im} {st}', tag=f'pt{GRP[Pp]}')
        it[-1]['dl'] = min(NM - 1, int(max(fp + 5, max(gend.values(), default=0)) + 26 * P['erate']))
        gend[GRP[Pp]] = it[-1]['dl']

    def setflag(g):
        return [('waittag', f'pt{g}'), f'buffer_store_dword v{vA}, off, s[{FL}:{FL+3}], s{sFO} offset:{12+4*g} sc1']

    def poll(name, v, so, off):
        ldt = f'buffer_load_dword v{v}, v{vPA}, s[{FL}:{FL+3}], {so} offen offset:{off} sc1'
        slow.append(f"""ffn_rw{name}:
  {'s_add_u32 s92, s92, 256' if OPT['stamps'] else ''}
  s_mov_b32 s87, 0x40000
ffn_rs{name}:
  {ldt}
  s_sub_u32 s87, s87, 1
  s_cbranch_scc1 ffn_rb{name}
  s_waitcnt vmcnt(0)
  v_cmp_eq_u32 vcc, 0, v{v}
  s_cbranch_vccnz ffn_rs{name}
  s_branch ffn_rb{name}""")
        return [ldt], [f'v_cmp_eq_u32 vcc, 0, v{v}', ('raw', f's_cbranch_vccnz ffn_rw{name}\nffn_rb{name}:')]
    def rloads(r):
        L = [[f'buffer_load_dwordx4 {q("v", RQ[r][i])}, v{vPL[r]}, s[{PR}:{PR+3}], {"0" if i == 0 else f"s{sNB[i-1]}"} offen sc1'] for i in range(8)]
        L.append([f's_lshl_b32 s78, s{sC[r]}, 12', f'buffer_load_dwordx2 v[{RQ[r][8]}:{RQ[r][8]+1}], v{vHR}, s[{HS}:{HS+3}], s78 offen'])
        L.append(['s_add_u32 s78, s78, 65536', f'buffer_load_dwordx2 v[{RQ[r][8]+2}:{RQ[r][8]+3}], v{vHR}, s[{HS}:{HS+3}], s78 offen'])
        return L
    post = []
    if OPT['fuse']:
        for r in range(2):
            ld_, ck_ = poll('AB'[r], vPB + r, '0', 12 + 4 * r)
            steps = [(P['d1'], setflag(r)), (P['r2'], [('require', 'redready')] + ld_), (P['d3'], ck_)] + [(P['rl'], x) for x in rloads(r)]
            p, log = gend[r], []
            for dp, ins in steps:
                if p is not None and p + dp < NM - 2:
                    p = place(p + dp, ins)
                    log.append(p - pC)
                else:
                    p = None
                    post.append(ins)
            print(f'   round {r}: stores done {gend[r]-pC}, then {log}', file=sys.stderr)
    if OPT['stamps']:
        for r, p in zip((sST + 2, 4, 6, 8, 10, 12), (0, p1, p2, pC, pC + 288, pC + 468) if not P.get('pst') else (pC + 288, NM - 1)):
            place(p, [f's_memtime s[{r}:{r+1}]'], slack=0)

    cumw = [0]
    for x in it:
        cumw.append(cumw[-1] + x['w'])
    dls = [(x['dl'], j + 1) for j, x in enumerate(it) if x['dl'] is not None]
    freec = [0]
    for p in range(NM):
        freec.append(freec[-1] + max(0, 2 - used[p]))
    j, acc = 0, 0.0
    for pos in range(NM):
        if j >= len(it) or it[j]['rel'] > pos:
            acc = 0.0
            continue
        rate = 0.0
        for d, jj in dls:
            if jj > j and d >= pos:
                k0 = j
                while True:
                    r0 = max(pos, it[k0]['rel'])
                    if r0 == pos:
                        need = cumw[jj] - cumw[j] - (freec[d + 1] - freec[pos])
                        if it[jj - 1]['rel'] <= pos or P.get('look', 1):
                            rate = max(rate, need / (d + 1 - pos))
                    break
        acc += max(rate, 0.0)
        room = max(0, 2 - used[pos])
        while j < len(it) and it[j]['rel'] <= pos and (room > 0 or acc >= 1 or any(d <= pos and jj > j for d, jj in dls)):
            w = it[j]['w']
            if w == 2 and room == 1 and acc < 1 and room2(pos):
                room = 2
            side[pos].append((it[j]['ins'], it[j]['tag'], it[j]['prov']))
            take = min(room, w)
            room -= take
            acc -= w - take
            used[pos] += w
            j += 1
    rest = it[j:]
    est = sum(max(16, 4 * (2 + u)) for u in used[:NM]) + 4 * sum(x['w'] for x in rest)
    ph = [0, p1, p2, pC, pC + 288, pC + 468, NM]
    print('   estimated cycles', est, [sum(max(16, 4 * (2 + u)) for u in used[a:b]) for a, b in zip(ph, ph[1:])], 'left after last mfma', len(rest), file=sys.stderr)

    provided = {'h0'}

    def emit_side(ins, tag, prov):
        for x in ins:
            if P.get('novalu') and isinstance(x, str) and x.startswith(('v_fmac', 'v_mul_f32', 'v_exp', 'v_rcp', 'v_add_f32', 'v_cvt', 'v_accvgpr_read')):
                continue
            if P.get('noexch') and ((isinstance(x, str) and ('sc1' in x or 'readfirst' in x)) or (isinstance(x, tuple) and ((x[0] == 'raw' and 'slow' in x[1]) or (x[0] == 'waittag' and x[1].startswith('hx'))))):
                continue
            if P.get('nodma') and isinstance(x, str) and x.endswith(' lds'):
                continue
            if P.get('noh') and isinstance(x, str) and f's[{HS}:' in x:
                continue
            if isinstance(x, tuple):
                if x[0] == 'waittag':
                    S.wait_tag(x[1])
                elif x[0] == 'require':
                    assert x[1] in provided, x
                elif x[0] == 'waitregs':
                    S.wait_regs(x[1])
                else:
                    S.raw(x[1])
            else:
                S(x, tag)
        if prov:
            provided.add(prov)

    def order_gap(items):
        if P.get('noorder'):
            return items
        out = []
        for x in items:
            txt = [y for y in x[0] if isinstance(y, str)]
            k = len(out)
            if len(txt) == len(x[0]) and all(not y.startswith('v_') for y in txt):
                mine = [Ins(y) for y in txt]
                rd = set().union(*[i.rd for i in mine])
                wr = set().union(*[i.wr for i in mine])
                while k > 0:
                    prev = out[k - 1][0]
                    if not all(isinstance(y, str) and y.startswith('v_') for y in prev):
                        break
                    pi = [Ins(y) for y in prev]
                    if any((i.wr & (rd | wr)) or (i.rd & wr) for i in pi):
                        break
                    k -= 1
            out.insert(k, x)
        return out

    def read(fi, h):
        f = frags[fi]
        r = AFR + 4 * (fi % 8) + 2 * h
        S(f'ds_read_b64_tr_b16 v[{r}:{r+1}], v{f["a"]} offset:{f["off"] + 512*h}')

    S.wait_tag('dma0')
    S('s_barrier')
    if P.get('sstamp'):
        S('s_memtime s[88:89]')
    for fi in range(D):
        read(fi, 0)
        read(fi, 1)
    kbar = {v: k for k, v in bar_at.items()}
    for pos, m in enumerate(mf):
        fi = m['frag']
        if fi is not None and m['n'] == 0 and fi % G == 0:
            S.wait_regs([q('v', AFR + 4 * (x % 8)) for x in range(fi, min(fi + G, len(frags)))])
        if m['tok']:
            assert m['tok'] in provided, (pos - pC, m)
        S(m['text'])
        emit_side(gpre[pos], None, None)
        for x in reads[pos]:
            read(*x)
        if P.get('sstamp') and pos in kbar:
            k = kbar[pos]
            S(f's_memtime s[{88+2*(k&1)}:{89+2*(k&1)}]')
            S(f'v_writelane_b32 v255, s{88+2*((k-1)&1)}, {k-1}')
        for x in order_gap(side[pos]):
            emit_side(*x)
    for x in side[NM]:
        emit_side(*x)
    for x in rest:
        emit_side(x['ins'], x['tag'], x['prov'])
    if OPT['fuse']:
        pst = lambda r: S(f's_memtime s[{r}:{r+1}]') if P.get('pst') else None
        if OPT['stamps']:
            S('s_memtime s[70:71]' if not P.get('pst') else 's_memtime s[6:7]')


        def rsum(r):
            A_, T_, O_ = AFR, AFR + 8, AFR + 16 + 4 * r
            for i in range(8):
                for d in range(4):
                    for h in range(2):
                        S(f'v_dot2_f32_bf16 v{A_+2*d+h}, v{RQ[r][i]+d}, v{vSH if h else vSL}, {"0" if i == 0 else f"v{A_+2*d+h}"}')
            for d in range(4):
                lo16(S, T_ + 2 * d, RQ[r][8] + d)
                hi16(S, T_ + 2 * d + 1, RQ[r][8] + d)
            for e in range(8):
                S(f'v_fmac_f32 v{T_+e}, v{vR2}, v{A_+e}')
            for d in range(4):
                S(f'v_cvt_pk_bf16_f32 v{O_+d}, v{T_+2*d}, v{T_+2*d+1}')
            S(f's_lshl_b32 s3, s{sC[r]}, 1')
            S(f'v_permlane16_swap_b32 v{O_}, v{O_+2}')
            S(f'v_permlane16_swap_b32 v{O_+1}, v{O_+3}')
            S(f'buffer_store_dwordx4 {q("v", O_)}, v{vOR[r]}, s[{OU}:{OU+3}], s3 offen {OPT["stout"]}')
        flags_first = [x for x in post if x[0][0] == 'waittag']
        for x in flags_first + [setflag(2)][:P['early2']] + [x for x in post if x not in flags_first] + [setflag(2)][P['early2']:]:
            emit_side(x, None, None)
        pst(8)
        ldC, ckC = poll('C', vPB, '0', 20)
        order = P['post']
        for ch in order:
            if ch in '01':
                rsum(int(ch))
            elif ch == 'p':
                pst(10)
                emit_side(ldC, None, None)
            elif ch == 'c':
                emit_side(ckC, None, None)
                pst(12)
                for x in rloads(2):
                    emit_side(x, None, None)
        if P.get('pst'):
            S.wait_regs([q('v', x) for x in RQ[2]])
            pst(70)
        rsum(2)
    if OPT['stamps']:
        if not OPT['fuse']:
            S('s_memtime s[70:71]')
        S('s_waitcnt vmcnt(0)')
        S('s_memtime s[72:73]')
        S('s_waitcnt lgkmcnt(0)')
        srd(S, FL, 14, 0x5000000, 65536)
        order = [sST, sST + 2, 4, 6, 8, 10, 12, 70, 72, 92]
        for i, r in enumerate(order):
            S(f'v_mov_b32 v{vTMP}, s{r}')
            S(f'buffer_store_dword v{vTMP}, off, s[{FL}:{FL+3}], s{sFO} offset:{4*i}')
    if P.get('sstamp'):
        S(f'v_writelane_b32 v255, s{88+2*((NSTG-1)&1)}, {NSTG-1}')
        S('s_memtime s[70:71]')
        S(f'v_writelane_b32 v255, s70, {NSTG}')
        srd(S, FL, 14, 0x5200000, 1 << 20)
        S(f's_lshl_b32 s3, s{sFO}, 2')
        S(f'v_lshrrev_b32 v{vTMP}, 2, v{vHO}')
        S(f'buffer_store_dword v255, v{vTMP}, s[{FL}:{FL+3}], s3 offen')
        print('STAGE_EST', [sum(max(16, 4 * (2 + u)) for u in used[max(bar_at[k],0):(bar_at[k+1] if k + 1 < NSTG else NM)]) for k in range(NSTG)], file=sys.stderr)
        print('STAGE_MF', [16 * ((bar_at[k+1] if k + 1 < NSTG else NM) - max(bar_at[k],0)) for k in range(NSTG)], file=sys.stderr)
    S('ffn_end:', 'nocheck')
    S('s_endpgm')
    body = S.finalize()
    if OPT['hop']:
        body = add_hops(S.out)
    print(f'ffn: {NM} mfma, {len(S.out)} instr, {S.n_wait} waits, {S.n_nop} nops, {NSTG} stages; p1={p1} p2={p2} pC={pC}', file=sys.stderr)
    return kernel_text('ffn_kernel', [body] + [x for x in slow if not (P.get('noexch') and x.startswith('ffn_slow'))], 512, 256), FFN_LDS
```

```python
import sys
from asmlib import Stream

NAME = 'sequential_preLN__ssm_conv_h3__glu_gated_swiglu__prompt'
S_, D_, F_ = 2048, 576, 4608
A_X, A_K, A_V, A_SH, A_SK, A_SD, A_W1, A_W3, A_W2, A_OUT, A_DBG, A_WS = 0, 8, 16, 24, 32, 40, 56, 64, 72, 80, 88, 96
NB_X = S_ * D_ * 2
NB_W = D_ * F_ * 2
WS_UR = 0x0
WS_XP = 0x240000
WS_ST = 0x480000
WS_H = 0x6C0000
WS_CS = 0x900000
WS_FLG = 0x910000
WS_RS = 0x920000
WS_PART = 0x1000000
WS_HHX = 0x3000000

OPT = dict(ldflag='', pfflag='', stflag='sc1', st1='', stamps=False, rt=False, hd=False, hop=512, fuse=True, stout='')


def srd(S, d, lo, off, nbytes):
    if isinstance(off, str) or off:
        S(f's_add_u32 s{d}, s{lo}, {off}')
        S(f's_addc_u32 s{d+1}, s{lo+1}, 0')
    else:
        S(f's_mov_b32 s{d}, s{lo}')
        S(f's_mov_b32 s{d+1}, s{lo+1}')
    S(f's_mov_b32 s{d+2}, {nbytes}')
    S(f's_mov_b32 s{d+3}, 0x20000')


def udiv(S, dst, src, c, tmp):
    S(f's_mov_b32 s{tmp}, {(1 << 32) // c + 1}')
    S(f's_mul_hi_u32 s{dst}, s{src}, s{tmp}')


def lo16(S, d, s):
    S(f'v_lshlrev_b32 v{d}, 16, v{s}')


def hi16(S, d, s):
    S(f'v_and_b32 v{d}, 0xffff0000, v{s}')


def xlane_sum(S, x, t, steps):
    for st in steps:
        if st == 8:
            S(f'v_add_f32_dpp v{x}, v{x}, v{x} row_ror:8 row_mask:0xf bank_mask:0xf')
        else:
            S(f'v_mov_b32 v{t}, v{x}')
            S(f'v_permlane{st}_swap_b32 v{t}, v{x}')
            S(f'v_add_f32 v{x}, v{x}, v{t}')


RT_BASE = 0x5100000


def mark(S, i):
    if OPT['rt']:
        S(f's_memrealtime s[{60+2*i}:{61+2*i}]')


def kernel_text(name, parts, vgpr, accum, sgpr=96):
    body = '\n'.join(parts)
    if OPT['rt']:
        kid = ['prep', 'conv', 'ffn', 'red'].index(name.split('_')[0])
        sgpr = 102
        tail = f"""  s_waitcnt vmcnt(0) lgkmcnt(0)
  s_memrealtime s[98:99]
  s_load_dwordx2 s[100:101], s[94:95], {A_WS}
  s_waitcnt lgkmcnt(0)
  s_add_u32 s100, s100, {RT_BASE + kid * 0x10000}
  s_addc_u32 s101, s101, 0
  s_mov_b64 exec, 1
  s_and_b32 s99, s16, 3
  s_cmp_ge_u32 s16, 4
  s_cselect_b32 s93, 0xf000, s93
  s_lshl_b32 s99, s99, 3
  s_add_u32 s93, s93, s99
  v_mov_b32 v0, s96
  v_mov_b32 v1, s98
  v_mov_b32 v2, s93
  global_store_dwordx2 v2, v[0:1], s[100:101]
  v_mov_b32 v4, s60
  v_mov_b32 v5, s62
  v_mov_b32 v6, s64
  v_mov_b32 v7, s66
  v_lshlrev_b32 v2, 1, v2
  s_add_u32 s100, s100, 0x40000 + {kid * 0x10000}
  s_addc_u32 s101, s101, 0
  global_store_dwordx4 v2, v[4:7], s[100:101]
  s_endpgm"""
        body = body.replace('  s_endpgm', tail)
        body = '  s_memrealtime s[96:97]\n  s_mov_b64 s[94:95], s[0:1]\n  s_lshl_b32 s93, s2, 5\n  s_waitcnt lgkmcnt(0)\n' + body
    if OPT['hd']:
        kid = ['prep', 'conv', 'ffn', 'red'].index(name.split('_')[0])
        sgpr = 102
        cnt = [0]

        def tail(m):
            cnt[0] += 1
            return f"""  s_and_b32 s99, s93, 15
  s_cmp_lg_u32 s99, 0
  s_cbranch_scc1 {name}_hd{cnt[0]}
  s_waitcnt vmcnt(0) lgkmcnt(0)
  s_memrealtime s[98:99]
  s_load_dwordx2 s[100:101], s[94:95], {A_DBG}
  s_waitcnt lgkmcnt(0)
  s_add_u32 s100, s100, {512 * ((2 if OPT['fuse'] else 3) - kid)}
  s_addc_u32 s101, s101, 0
  s_mov_b64 exec, 1
  s_not_b32 s96, s96
  v_mov_b32 v0, s96
  v_mov_b32 v1, s98
  v_mov_b32 v2, {8 * kid}
  global_atomic_umax v2, v0, s[100:101]
  global_atomic_umax v2, v1, s[100:101] offset:4
{name}_hd{cnt[0]}:
  s_endpgm"""
        import re
        body = re.sub('  s_endpgm', tail, body)
        body = '  s_memrealtime s[96:97]\n  s_mov_b64 s[94:95], s[0:1]\n  s_mov_b32 s93, s2\n  s_waitcnt lgkmcnt(0)\n' + body
    return f""".text
.p2align 8
{name}:
{body}
.section .rodata,"a"
.p2align 6
.amdhsa_kernel {name}
  .amdhsa_next_free_vgpr {vgpr}
  .amdhsa_next_free_sgpr {sgpr}
  .amdhsa_accum_offset {accum}
  .amdhsa_group_segment_fixed_size 0
  .amdhsa_kernarg_size 104
  .amdhsa_user_sgpr_count 2
  .amdhsa_user_sgpr_kernarg_segment_ptr 1
  .amdhsa_system_sgpr_workgroup_id_x 1
  .amdhsa_float_denorm_mode_32 3
.end_amdhsa_kernel
"""


K1_NWG = 448


def gen_prep():
    ld, st = OPT['ldflag'], OPT['st1']
    parts = []
    S = Stream('prep0')
    S(f's_load_dwordx4 s[4:7], s[0:1], {A_X}')
    S(f's_load_dwordx4 s[8:11], s[0:1], {A_V}')
    S(f's_load_dwordx2 s[14:15], s[0:1], {A_WS}')
    S('v_lshrrev_b32 v2, 6, v0')
    S('v_and_b32 v1, 7, v0')
    S('v_readfirstlane_b32 s16, v2')
    S('v_bfe_u32 v2, v0, 3, 3')
    S('s_mov_b32 s23, 0x20000')
    S('s_mov_b32 s27, 0x20000')
    S('s_mov_b32 s31, 0x20000')
    S('s_mov_b32 s35, 0x20000')
    S(f's_mov_b32 s22, {NB_X}')
    S(f's_mov_b32 s26, {NB_X}')
    S('s_cmp_ge_u32 s2, 288')
    S('s_cbranch_scc1 prep_ln', 'nocheck')

    udiv(S, 17, 2, 9, 18)
    S('s_mul_i32 s18, s17, 9')
    S('s_sub_u32 s18, s2, s18')
    S('s_lshl_b32 s17, s17, 1')
    S('s_add_u32 s17, s17, s16')
    S('s_lshl_b32 s17, s17, 5')
    S('v_lshl_add_u32 v3, v2, 2, s17')
    S('s_lshl_b32 s18, s18, 3')
    S('v_add_u32 v1, s18, v1')
    S('v_mul_u32_u24 v4, 1152, v3')
    S('v_lshl_add_u32 v4, v1, 4, v4')
    S('v_subrev_u32 v5, 3456, v4')
    S('v_lshlrev_b32 v6, 6, v1')
    S('s_waitcnt lgkmcnt(0)')
    mark(S, 0)
    S('s_mov_b32 s20, s6')
    S('s_mov_b32 s21, s7')
    S('s_mov_b32 s24, s8')
    S('s_mov_b32 s25, s9')
    KR, VR, SR = 12, 40, 56
    for d in range(3):
        S(f'buffer_load_dwordx4 v[{KR+4*d}:{KR+4*d+3}], v5, s[20:23], 0 offen offset:{1152*d} {ld}')
    for d in range(4):
        S(f'buffer_load_dwordx4 v[{KR+12+4*d}:{KR+15+4*d}], v4, s[20:23], 0 offen offset:{1152*d} {ld}')
    S('s_mov_b32 s28, s10')
    S('s_mov_b32 s29, s11')
    S(f's_mov_b32 s30, {D_*8}')
    for d in range(4):
        S(f'buffer_load_dwordx4 v[{SR+4*d}:{SR+4*d+3}], v6, s[28:31], 0 offen offset:{16*d}')
    for d in range(4):
        S(f'buffer_load_dwordx4 v[{VR+4*d}:{VR+4*d+3}], v4, s[24:27], 0 offen offset:{1152*d} {ld}')
    S(f's_add_u32 s32, s14, {WS_UR}')
    S('s_addc_u32 s33, s15, 0')
    S(f's_mov_b32 s34, {NB_X}')
    S('v_lshlrev_b32 v7, 15, v1')
    S('v_lshlrev_b32 v3, 1, v3')
    S('v_sub_u32 v7, v7, v3')
    S('v_add_u32 v7, 4088, v7')
    for c in range(1, 8):
        S(f's_mov_b32 s{35+c}, {4096*c}')
    mark(S, 1)
    KF, SF, VF, OF, PK = 72, 86, 94, 102, 110
    for p in range(4):
        for d in range(7):
            lo16(S, KF + 2 * d, KR + 4 * d + p)
            hi16(S, KF + 2 * d + 1, KR + 4 * d + p)
        for c in range(2):
            for h in range(2):
                lo16(S, SF + 2 * (2 * h) + c, SR + 4 * p + 2 * c + h)
                hi16(S, SF + 2 * (2 * h + 1) + c, SR + 4 * p + 2 * c + h)
        for j in range(4):
            for i in range(4):
                o, kf, sh = OF + 2 * i, KF + 2 * (i + 3 - j), SF + 2 * j
                if j == 0:
                    S(f'v_pk_mul_f32 v[{o}:{o+1}], v[{kf}:{kf+1}], v[{sh}:{sh+1}]')
                else:
                    S(f'v_pk_fma_f32 v[{o}:{o+1}], v[{kf}:{kf+1}], v[{sh}:{sh+1}], v[{o}:{o+1}]')
        for i in range(4):
            lo16(S, VF + 2 * i, VR + 4 * i + p)
            hi16(S, VF + 2 * i + 1, VR + 4 * i + p)
        for i in range(4):
            o = OF + 2 * i
            S(f'v_pk_mul_f32 v[{o}:{o+1}], v[{o}:{o+1}], v[{VF+2*i}:{VF+2*i+1}]')
        for c in range(2):
            r = PK + 4 * p + 2 * c
            S(f'v_cvt_pk_bf16_f32 v{r}, v{OF+6+c}, v{OF+4+c}')
            S(f'v_cvt_pk_bf16_f32 v{r+1}, v{OF+2+c}, v{OF+c}')
            ch = 2 * p + c
            S(f'buffer_store_dwordx2 v[{r}:{r+1}], v7, s[32:35], {"0" if ch == 0 else f"s{35+ch}"} offen {st}')
        if p == 0:
            mark(S, 2)
    mark(S, 3)
    S('s_endpgm')
    parts.append(S.finalize())

    S = Stream('prep_ln')
    S('prep_ln:')
    S('s_cmp_ge_u32 s2, 416')
    S('s_cbranch_scc1 prep_pf')
    S('s_sub_u32 s3, s2, 288')
    S('s_lshl_b32 s3, s3, 1')
    S('s_add_u32 s3, s3, s16')
    S('s_lshl_b32 s3, s3, 3')
    S('v_add_u32 v2, s3, v2')
    S('v_mul_u32_u24 v4, 1152, v2')
    S('v_lshl_add_u32 v4, v1, 4, v4')
    S('s_waitcnt lgkmcnt(0)')
    mark(S, 0)
    S('s_mov_b32 s20, s4')
    S('s_mov_b32 s21, s5')
    for i in range(9):
        S(f'buffer_load_dwordx4 v[{12+4*i}:{15+4*i}], v4, s[20:23], 0 offen offset:{128*i} {ld}')
    S(f's_add_u32 s24, s14, {WS_XP}')
    S('s_addc_u32 s25, s15, 0')
    S(f's_add_u32 s28, s14, {WS_ST}')
    S('s_addc_u32 s29, s15, 0')
    S(f's_mov_b32 s30, {S_*8}')
    S('v_lshlrev_b32 v2, 3, v2')
    S('v_lshl_add_u32 v3, v1, 15, v2')
    S('v_add_u32 v5, 16384, v3')
    S('v_mov_b32 v10, 0x3f803f80')
    for i in range(4):
        S(f'v_mov_b32 v{6+i}, 0')
    mark(S, 1)
    for i in range(9):
        S(f's_mov_b32 s3, {i*262144}')
        S(f'buffer_store_dwordx2 v[{12+4*i}:{13+4*i}], v3, s[24:27], s3 offen {st}')
        S(f'buffer_store_dwordx2 v[{14+4*i}:{15+4*i}], v5, s[24:27], s3 offen {st}')
        for d in range(4):
            r = 12 + 4 * i + d
            S(f'v_dot2_f32_bf16 v{6+(d&1)}, v{r}, v10, v{6+(d&1)}')
            S(f'v_dot2_f32_bf16 v{8+(d&1)}, v{r}, v{r}, v{8+(d&1)}')
        if i == 0:
            mark(S, 2)
    S('s_nop 2')
    S('v_add_f32 v6, v6, v7')
    S('v_add_f32 v8, v8, v9')
    for dpp in ('quad_perm:[1,0,3,2]', 'quad_perm:[2,3,0,1]', 'row_half_mirror'):
        S(f'v_add_f32_dpp v6, v6, v6 {dpp} row_mask:0xf bank_mask:0xf')
        S(f'v_add_f32_dpp v8, v8, v8 {dpp} row_mask:0xf bank_mask:0xf')
    S(f'v_mul_f32 v7, {-1.0/576!r}, v6')
    S('v_mov_b32 v6, 0x3727c5ac')
    S(f'v_fmac_f32 v6, {1.0/576!r}, v8')
    S('v_fma_f32 v6, -v7, v7, v6')
    S('v_max_f32 v6, 0x3727c5ac, v6')
    S('v_rsq_f32 v6, v6')
    S('v_mul_f32 v7, v7, v6')
    S(f'buffer_store_dwordx2 v[6:7], v2, s[28:31], 0 offen {st}')
    mark(S, 3)
    S('s_endpgm')
    parts.append(S.finalize())

    S = Stream('prep_pf')
    S('prep_pf:')
    S(f's_cmp_ge_u32 s2, {K1_NWG}')
    S('s_cbranch_scc1 prep_end')
    S('s_sub_u32 s3, s2, 416')
    S('v_lshlrev_b32 v2, 4, v0')
    for i in range(4):
        S(f'v_mov_b32 v{8+i}, 0')
    S('s_lshl_b32 s17, s3, 12')
    S('s_lshr_b32 s18, s3, 3')
    S(f's_mul_i32 s18, s18, {10*2048}')
    S('s_getpc_b64 s[20:21]')
    parts.append(S.finalize())
    parts.append('prep_pc:\n  s_add_u32 s20, s20, conv_kernel-prep_pc\n  s_addc_u32 s21, s21, 0\n'
                 '  s_mov_b32 s22, code_end-conv_kernel')
    S = Stream('prep_pf2')
    for i in range(10):
        S(f's_add_u32 s3, s18, {i*2048}')
        S(f'buffer_load_dwordx4 v[{12+4*i}:{15+4*i}], v2, s[20:23], s3 offen')
    S('s_waitcnt lgkmcnt(0)')
    S(f's_add_u32 s24, s14, {WS_CS}')
    S('s_addc_u32 s25, s15, 0')
    S('s_mov_b32 s26, 0x20000')
    S(f'buffer_store_dwordx4 v[8:11], v2, s[24:27], s17 offen {st}')
    S(f'buffer_store_dwordx4 v[8:11], v2, s[24:27], s17 offen offset:2048 {st}')
    S('prep_end:', 'nocheck')
    S('s_endpgm')
    parts.append(S.finalize())
    return kernel_text('prep_kernel', parts, 128, 128)


CV_CH = 12928
CV_Y = 4 * CV_CH
CV_LDS = CV_Y + 32768


def hop_call(name, wave_sgpr):
    if not OPT['hop']:
        return ''
    t = f'  s_mov_b64 exec, 0\n  s_and_b32 s92, s{wave_sgpr}, 3\n'
    for w in range(3):
        t += f'  s_cmp_lg_u32 s92, {w}\n  s_cbranch_scc1 {name}_n{w}\n  s_call_b64 s[90:91], ffn_hopq{w}\n  s_branch {name}_ret\n{name}_n{w}:\n'
    t += f'  s_call_b64 s[90:91], ffn_hopq3\n{name}_ret:\n  s_mov_b64 exec, -1'
    return t


def gen_conv():
    pf, st = OPT['pfflag'], OPT['stflag']
    parts = []
    S = Stream('conv0')
    S(f's_load_dwordx4 s[4:7], s[0:1], {A_SK}')
    S(f's_load_dwordx2 s[14:15], s[0:1], {A_WS}')
    S(f's_load_dwordx4 s[8:11], s[0:1], {A_W1}')
    S(f's_load_dwordx2 s[12:13], s[0:1], {A_W2}')
    S('v_lshrrev_b32 v2, 6, v0')
    S('v_and_b32 v1, 63, v0')
    S('v_readfirstlane_b32 s16, v2')
    S('s_cmp_ge_u32 s2, 144')
    S('s_cbranch_scc1 conv_cs', 'nocheck')
    S('s_cmp_ge_u32 s16, 4')
    S('s_cbranch_scc1 conv_help', 'nocheck')
    S('s_lshl_b32 s3, s2, 2')
    S('s_add_u32 s3, s3, s16')
    S('s_lshl_b32 s17, s3, 12')
    S(f's_mul_i32 s18, s16, {CV_CH}')
    S('v_lshlrev_b32 v2, 4, v1')
    S('v_add_u32 v3, 2, v2')
    S('s_mov_b32 m0, s18')
    S('s_waitcnt lgkmcnt(0)')
    mark(S, 0)
    srd(S, 20, 14, WS_UR, NB_X)
    for i in range(4):
        S(f'buffer_load_dwordx4 v2, s[20:23], s17 offen offset:{1024*i} lds', 'dma')
    srd(S, 24, 4, 0, NB_X)
    S(f's_add_u32 m0, s18, {4608+32}')
    srd(S, 28, 6, 0, D_ * 2)
    S('v_mov_b32 v4, 0')
    S('s_lshl_b32 s19, s3, 1')
    S('buffer_load_ushort v5, v4, s[24:27], s17 offen')
    S('buffer_load_ushort v6, v4, s[28:31], s19 offen')
    for i in range(4):
        S(f'buffer_load_dwordx4 v2, s[24:27], s17 offen offset:{1024*i} lds', 'dma')
    S(f's_add_u32 m0, s18, {4608+4160+32}')
    S('v_mov_b32 v8, 0')
    for i in range(4):
        S(f'buffer_load_dwordx4 v3, s[24:27], s17 offen offset:{1024*i} lds', 'dma')
    srd(S, 32, 14, WS_XP, NB_X)
    srd(S, 36, 14, WS_H, NB_X)
    srd(S, 44, 14, WS_ST, S_ * 8)
    S('v_mov_b32 v9, 0')
    S('v_lshl_add_u32 v10, v1, 3, s18')
    S('ds_write_b64 v10, v[8:9] offset:4096')
    S('v_and_b32 v11, 15, v1')
    S('v_lshrrev_b32 v12, 4, v1')
    S('v_and_b32 v13, 1, v1')
    S('v_cmp_eq_u32 vcc, 1, v13')
    S('v_mov_b32 v13, 4160')
    S('v_cndmask_b32 v13, v13, 2, vcc')
    S('v_lshl_add_u32 v13, v11, 1, v13')
    S('v_lshl_add_u32 v13, v12, 4, v13')
    S(f's_add_u32 s40, s18, 4608')
    S('v_add_u32 v16, s40, v13')
    for qp in range(1, 4):
        S(f'v_add_u32 v{16+qp}, {1024*qp}, v16')
    S('v_lshlrev_b32 v13, 5, v11')
    S('v_sub_u32 v13, 480, v13')
    S('v_lshl_add_u32 v13, v12, 4, v13')
    S('v_add_u32 v15, s18, v13')
    S('v_lshlrev_b32 v7, 6, v11')
    S('v_lshl_add_u32 v7, v12, 4, v7')
    S('s_lshl_b32 s41, s16, 13')
    S(f's_add_u32 s41, s41, {CV_Y}')
    S('v_add_u32 v7, s41, v7')
    S('v_lshlrev_b32 v10, 3, v0')
    S(f'v_add_u32 v10, {CV_Y}, v10')
    S('v_lshlrev_b32 v4, 4, v0')
    S('s_lshl_b32 s19, s2, 14')
    S('v_sub_u32 v13, 15, v11')
    S('v_and_b32 v14, 1, v13')
    S('v_lshlrev_b32 v14, 4, v14')
    S('v_lshrrev_b32 v13, 1, v13')
    S('v_lshlrev_b32 v12, 2, v12')
    S('v_sub_u32 v12, v13, v12')
    S('v_lshlrev_b32 v6, v14, v6')
    for dw in range(4):
        S(f'v_cmp_eq_u32 vcc, {dw}, v12')
        S(f'v_cndmask_b32 v{176+dw}, 0, v6, vcc')
    S('v_and_b32 v13, 7, v1')
    S('v_lshlrev_b32 v13, 2, v13')
    S('v_bfe_u32 v14, v1, 3, 1')
    S('v_mul_u32_u24 v14, 4160, v14')
    S('v_add3_u32 v13, v13, v14, s40')
    S('v_lshlrev_b32 v5, 16, v5')
    S('v_cmp_eq_u32 vcc, 15, v11')
    S('v_cndmask_b32 v14, 0, v5, vcc')
    S('ds_write_b32 v13, v14')
    S.wait_tag('dma')
    S('s_waitcnt lgkmcnt(0)')
    mark(S, 1)
    ACC, AF, BF, XQ = 20, [52, 84], [116, 212], 180

    def reads(r):
        a, b = AF[r & 1], BF[r & 1]
        L = []
        order = [('A', 0), ('B', 0)]
        for k in range(1, 8):
            order += [('B', k), ('A', k)]
        for kind, k in order:
            if kind == 'A':
                o = (k & 1) * 128 + 16 * r
                L.append(f'ds_read2_b32 v[{a+4*k}:{a+4*k+1}], v{16+(k>>1)} offset0:{o} offset1:{o+1}')
                L.append(f'ds_read2_b32 v[{a+4*k+2}:{a+4*k+3}], v{16+(k>>1)} offset0:{o+2} offset1:{o+3}')
            else:
                L.append(f'ds_read_b128 v[{b+4*k}:{b+4*k+3}], v15 offset:{512*(7-k)+64*r}')
        return L

    for x in reads(0):
        S(x)
    first = [True] * 8
    for r in range(8):
        a, b = AF[r & 1], BF[r & 1]
        pairs = sorted([(Q, m) for Q in range(8) for m in range(8) if Q + m <= 7], key=lambda p: (max(p), p[0] + p[1]))
        mf = []
        for Q, m in pairs:
            n = Q + m
            c = '0' if first[n] else f'v[{ACC+4*n}:{ACC+4*n+3}]'
            first[n] = False
            mf.append(f'v_mfma_f32_16x16x32_bf16 v[{ACC+4*n}:{ACC+4*n+3}], v[{a+4*Q}:{a+4*Q+3}], v[{b+4*m}:{b+4*m+3}], {c}')
        if r == 0:
            for n in range(8):
                mf.append(f'v_mfma_f32_16x16x32_bf16 v[{ACC+4*n}:{ACC+4*n+3}], v[176:179], v[{b+4*n}:{b+4*n+3}], v[{ACC+4*n}:{ACC+4*n+3}]')
        nxt = reads(r + 1) if r < 7 else []
        if r:
            S.wait_regs([f'v[{a}:{a+31}]', f'v[{b}:{b+31}]'])
        lag = 8 if r == 0 else 0
        for i, m in enumerate(mf):
            S(m)
            if i >= lag and nxt:
                S(nxt.pop(0))
            if 1 <= r <= 4 and i == 28:
                S(f's_add_u32 s40, s19, {(r-1)*4096}')
                S(f'buffer_load_dwordx4 v[{XQ+8*(r-1)}:{XQ+8*(r-1)+3}], v4, s[32:35], s40 offen')
            if 1 <= r <= 4 and i == 32:
                S(f's_mov_b32 s40, {(r-1)*4096}')
                S(f'buffer_load_dwordx4 v[{XQ+8*(r-1)+4}:{XQ+8*(r-1)+7}], v4, s[44:47], s40 offen')
        assert not nxt
    mark(S, 2)
    for n in range(8):
        S(f'ds_write_b128 v7, v[{ACC+4*n}:{ACC+4*n+3}] offset:{1024*n}')
    T = 116
    for it in range(4):
        for tk in range(2):
            for h in range(2):
                x, t = XQ + 8 * it + 2 * tk + h, T + 16 * it + 8 * tk + 4 * h
                lo16(S, t, x)
                hi16(S, t + 1, x)
                S(f'v_fma_f32 v{t+2}, v{t}, v{XQ+8*it+4+2*tk}, v{XQ+8*it+5+2*tk}')
                S(f'v_fma_f32 v{t+3}, v{t+1}, v{XQ+8*it+4+2*tk}, v{XQ+8*it+5+2*tk}')
    S('s_waitcnt lgkmcnt(0)')
    S('s_barrier')
    Y = 52
    for it in range(4):
        for c in range(4):
            S(f'ds_read_b64 v[{Y+8*it+2*c}:{Y+8*it+2*c+1}], v10 offset:{c*8192+2048*it}')
    for it in range(4):
        for tk in range(2):
            for h in range(2):
                t = T + 16 * it + 8 * tk + 4 * h
                S(f'v_fmac_f32 v{t}, v{t+2}, v{Y+8*it+2*(2*h)+tk}')
                S(f'v_fmac_f32 v{t+1}, v{t+3}, v{Y+8*it+2*(2*h+1)+tk}')
                S(f'v_cvt_pk_bf16_f32 v{ACC+4*it+2*tk+h}, v{t}, v{t+1}')
        S(f's_add_u32 s40, s19, {it*4096}')
        S(f'buffer_store_dwordx4 v[{ACC+4*it}:{ACC+4*it+3}], v4, s[36:39], s40 offen {st}')
    mark(S, 3)
    S('s_endpgm')
    parts.append(S.finalize())

    parts.append('conv_help:\n' + hop_call('conv_h1', 16))
    S = Stream('conv_help')
    S('s_waitcnt lgkmcnt(0)')
    srd(S, 20, 12, 0, NB_W)
    S('s_and_b32 s17, s2, 7')
    S('s_mul_i32 s17, s17, 663552')
    S('s_lshr_b32 s18, s2, 3')
    S('s_mul_i32 s18, s18, 36864')
    S('s_add_u32 s18, s18, s17')
    S('v_and_b32 v2, 255, v0')
    S('v_lshlrev_b32 v2, 4, v2')
    for i in range(9):
        S(f's_add_u32 s3, s18, {i*4096}')
        S(f'buffer_load_dwordx4 v[{8+4*i}:{11+4*i}], v2, s[20:23], s3 offen {pf}')
    S('s_endpgm')
    parts.append(S.finalize())

    S = Stream('conv_cs')
    S('conv_cs:')
    S('s_cmp_ge_u32 s2, 240')
    S('s_cbranch_scc1 conv_hop')
    S('s_sub_u32 s3, s2, 144')
    S('s_and_b32 s17, s3, 7')
    S('s_lshr_b32 s18, s3, 3')
    S('s_mul_i32 s17, s17, 1152')
    S('s_lshr_b32 s19, s18, 2')
    S('s_mul_i32 s19, s19, 384')
    S('s_add_u32 s17, s17, s19')
    S('s_and_b32 s19, s18, 1')
    S('s_lshl_b32 s19, s19, 3')
    S('s_add_u32 s19, s19, s16')
    S(f's_mul_i32 s19, s19, {36*9216}')
    S('s_add_u32 s19, s19, s17')
    S('v_cmp_le_u32 vcc, 24, v1')
    S(f'v_cndmask_b32 v2, 0, 1, vcc')
    S(f'v_mul_u32_u24 v2, {9216-384}, v2')
    S('v_lshl_add_u32 v2, v1, 4, v2')
    S('v_bfrev_b32 v3, 1')
    S('v_cmp_le_u32 vcc, 48, v1')
    S('v_cndmask_b32 v2, v2, v3, vcc')
    S('s_bitcmp1_b32 s18, 1')
    S('s_waitcnt lgkmcnt(0)')
    S('s_cselect_b32 s20, s10, s8')
    S('s_cselect_b32 s21, s11, s9')
    S(f's_cselect_b32 s24, {F_*4}, 0')
    S(f's_mov_b32 s22, {NB_W}')
    S('s_mov_b32 s23, 0x20000')
    mark(S, 0)
    parts.append(S.finalize())
    parts.append(hop_call('conv_h2', 16))
    S = Stream('conv_cs2')
    for i in range(18):
        S(f's_add_u32 s3, s19, {i*2*9216}')
        S(f'buffer_load_dwordx4 v[{32+4*i}:{35+4*i}], v2, s[20:23], s3 offen {pf}')
    mark(S, 1)
    srd(S, 28, 14, WS_CS, 2 * F_ * 4)
    for i in range(18):
        r = 32 + 4 * i
        for dw in range(4):
            if i == 0:
                lo16(S, 8 + 2 * dw, r + dw)
                hi16(S, 9 + 2 * dw, r + dw)
            else:
                t = 16 + 2 * dw
                lo16(S, t, r + dw)
                hi16(S, t + 1, r + dw)
                S(f'v_pk_add_f32 v[{8+2*dw}:{9+2*dw}], v[{8+2*dw}:{9+2*dw}], v[{t}:{t+1}]')
    mark(S, 2)
    S('v_lshlrev_b32 v4, 5, v0')
    S('ds_write_b128 v4, v[8:11]')
    S('ds_write_b128 v4, v[12:15] offset:16')
    S('v_lshlrev_b32 v5, 2, v0')
    S('s_waitcnt lgkmcnt(0)')
    S('s_barrier')
    S('s_cmp_ge_u32 s16, 3')
    S('s_cbranch_scc1 conv_end')
    for w in range(16):
        S(f'ds_read_b32 v{8+w}, v5 offset:{2048*(w>>1)+768*(w&1)}')
    for stp in (8, 4, 2, 1):
        for w in range(stp):
            S(f'v_add_f32 v{8+w}, v{8+w}, v{8+w+stp}')
    S('s_lshl_b32 s17, s17, 1')
    S('s_add_u32 s17, s17, s24')
    S('buffer_atomic_add_f32 v8, v5, s[28:31], s17 offen')
    mark(S, 3)
    S('s_endpgm')
    parts.append(S.finalize())
    parts.append('conv_hop:\n  s_cmp_ge_u32 s2, 256\n  s_cbranch_scc1 conv_end\n  s_cmp_ge_u32 s16, 4\n  s_cbranch_scc1 conv_end\n' +
                 hop_call('conv_h3', 16) + '\nconv_end:\n  s_endpgm')
    return kernel_text('conv_kernel', parts, 248, 248)


def gen_red():
    S = Stream('red')
    S('s_cmp_ge_u32 s2, 576')
    S('s_cbranch_scc1 red_end')
    S(f's_load_dwordx2 s[4:5], s[0:1], {A_OUT}')
    S(f's_load_dwordx2 s[14:15], s[0:1], {A_WS}')
    S('v_lshrrev_b32 v2, 6, v0')
    S('v_and_b32 v1, 63, v0')
    S('v_readfirstlane_b32 s16, v2')
    S('s_lshl_b32 s3, s2, 2')
    S('s_add_u32 s3, s3, s16')
    S('s_waitcnt lgkmcnt(0)')
    srd(S, 20, 14, WS_PART, 8 * NB_X)
    srd(S, 24, 14, WS_H, NB_X)
    srd(S, 28, 14, WS_RS, S_ * 4)
    srd(S, 32, 4, 0, NB_X)
    S('s_lshl_b32 s17, s3, 10')
    S('v_lshlrev_b32 v2, 4, v1')
    for p in range(8):
        S(f's_add_u32 s18, s17, {p*NB_X}')
        S(f'buffer_load_dwordx4 v[{16+4*p}:{19+4*p}], v2, s[20:23], s18 offen')
    udiv(S, 17, 3, 9, 18)
    S('s_mul_i32 s18, s17, 9')
    S('s_sub_u32 s18, s3, s18')
    S('s_lshr_b32 s19, s17, 4')
    S('s_lshl_b32 s19, s19, 2')
    S('s_bfe_u32 s36, s17, 0x20001')
    S('s_add_u32 s19, s19, s36')
    S('s_lshl_b32 s19, s19, 5')
    S('s_and_b32 s36, s17, 1')
    S('s_add_u32 s19, s19, s36')
    S('s_bfe_u32 s36, s17, 0x10003')
    S('s_lshl_b32 s37, s18, 5')
    S('s_mul_i32 s38, s36, 320')
    S('s_add_u32 s37, s37, s38')
    S('s_lshl_b32 s38, s36, 5')
    S('s_add_u32 s38, s38, 256')
    S('s_cmp_lt_u32 s18, 8')
    S('s_cselect_b32 s37, s37, s38')
    S('v_and_b32 v3, 15, v1')
    S('v_lshl_add_u32 v3, v3, 1, s19')
    S('v_lshrrev_b32 v4, 4, v1')
    S('v_lshlrev_b32 v5, 14, v4')
    S('v_lshl_add_u32 v5, v3, 3, v5')
    S('s_lshl_b32 s38, s37, 12')
    S('s_add_u32 s39, s38, 65536')
    S('buffer_load_dwordx2 v[8:9], v5, s[24:27], s38 offen')
    S('buffer_load_dwordx2 v[10:11], v5, s[24:27], s39 offen')
    S('v_lshlrev_b32 v6, 2, v3')
    S('buffer_load_dword v7, v6, s[28:31], 0 offen')
    S('v_mul_u32_u24 v3, 1152, v3')
    S('v_and_b32 v6, 1, v4')
    S('v_lshl_add_u32 v3, v6, 5, v3')
    S('v_lshrrev_b32 v6, 1, v4')
    S('v_lshl_add_u32 v3, v6, 4, v3')
    S('s_lshl_b32 s37, s37, 1')
    A = 48
    for p in range(8):
        for dw in range(4):
            if p == 0:
                lo16(S, A + 2 * dw, 16 + dw)
                hi16(S, A + 2 * dw + 1, 16 + dw)
            else:
                t = 56 + 2 * dw
                lo16(S, t, 16 + 4 * p + dw)
                hi16(S, t + 1, 16 + 4 * p + dw)
                S(f'v_pk_add_f32 v[{A+2*dw}:{A+2*dw+1}], v[{A+2*dw}:{A+2*dw+1}], v[{t}:{t+1}]')
    for dw in range(4):
        t = 56 + 2 * dw
        lo16(S, t, 8 + dw)
        hi16(S, t + 1, 8 + dw)
        S(f'v_fmac_f32 v{t}, v7, v{A+2*dw}')
        S(f'v_fmac_f32 v{t+1}, v7, v{A+2*dw+1}')
        S(f'v_cvt_pk_bf16_f32 v{12+dw}, v{t}, v{t+1}')
    S('v_permlane16_swap_b32 v12, v14')
    S('v_permlane16_swap_b32 v13, v15')
    S('buffer_store_dwordx4 v[12:15], v3, s[32:35], s37 offen')
    S('red_end:')
    S('s_endpgm')
    return kernel_text('red_kernel', [S.finalize()], 64, 64)


def unpack_hhx(t):
    import torch
    out = torch.zeros(2048, 4608)
    for wg in range(256):
        x, p, tile = wg & 7, (wg >> 3) & 1, wg >> 4
        fo = [32 * i for i in range(9)] if p == 0 else [32 + 32 * i for i in range(8)] + [0]
        for s in range(9):
            f0 = 288 * (2 * x + p) + fo[s]
            a = t[wg, :, s].reshape(4, 2, 4, 16, 2, 4)
            a = a.permute(0, 3, 1, 4, 2, 5).reshape(128, 32)
            out[128 * tile:128 * tile + 128, f0:f0 + 32] = a
    return out


def build(ffn_text, ffn_lds):
    head = f"""; H3 long-convolution block + SwiGLU FFN with pre-LayerNorm, four launches (generated by my gen.py)
; @launch kernel=prep_kernel grid=({K1_NWG},1,1) block=(128,1,1) lds=0
; @launch kernel=conv_kernel grid=(256,1,1) block=(512,1,1) lds={CV_LDS}
; @launch kernel=ffn_kernel grid=(256,1,1) block=(256,1,1) lds={ffn_lds}
{'' if OPT['fuse'] else '; @launch kernel=red_kernel grid=(576,1,1) block=(256,1,1) lds=0'}
.amdgcn_target "amdgcn-amd-amdhsa--gfx950"
"""
    return head + gen_prep() + gen_conv() + ffn_text + ('' if OPT['fuse'] else gen_red()) + '.text\ncode_end:\n  s_endpgm\n'


if __name__ == '__main__':
    import gen as _g
    from gen_ffn import gen_ffn
    P = {}
    for a in sys.argv[2:]:
        k, v = a.split('=')
        v = eval(v)
        if k in OPT:
            OPT[k] = v
            _g.OPT[k] = v
        else:
            P[k] = v
    txt, lds = gen_ffn(P)
    out = sys.argv[1] if len(sys.argv) > 1 else f'cdna_kernels/{NAME}.s'
    open(out, 'w').write(build(txt, lds))
    print('wrote', out)
```

```python
import sys
from asmlib import Stream

NAME = 'sequential_preLN__ssm_conv_h3__glu_gated_swiglu__prompt'
S_, D_, F_ = 2048, 576, 4608
A_X, A_K, A_V, A_SH, A_SK, A_SD, A_W1, A_W3, A_W2, A_OUT, A_DBG, A_WS = 0, 8, 16, 24, 32, 40, 56, 64, 72, 80, 88, 96
NB_X = S_ * D_ * 2
NB_W = D_ * F_ * 2
WS_UR = 0x0
WS_XP = 0x240000
WS_ST = 0x480000
WS_H = 0x6C0000
WS_CS = 0x900000
WS_FLG = 0x910000
WS_RS = 0x920000
WS_PART = 0x1000000
WS_HHX = 0x3000000

OPT = dict(ldflag='', pfflag='', stflag='sc1', st1='', stamps=False, rt=False, hd=False, hop=512, fuse=True, stout='', probe=None)


def srd(S, d, lo, off, nbytes):
    if isinstance(off, str) or off:
        S(f's_add_u32 s{d}, s{lo}, {off}')
        S(f's_addc_u32 s{d+1}, s{lo+1}, 0')
    else:
        S(f's_mov_b32 s{d}, s{lo}')
        S(f's_mov_b32 s{d+1}, s{lo+1}')
    S(f's_mov_b32 s{d+2}, {nbytes}')
    S(f's_mov_b32 s{d+3}, 0x20000')


def udiv(S, dst, src, c, tmp):
    S(f's_mov_b32 s{tmp}, {(1 << 32) // c + 1}')
    S(f's_mul_hi_u32 s{dst}, s{src}, s{tmp}')


def lo16(S, d, s):
    S(f'v_lshlrev_b32 v{d}, 16, v{s}')


def hi16(S, d, s):
    S(f'v_and_b32 v{d}, 0xffff0000, v{s}')


def xlane_sum(S, x, t, steps):
    for st in steps:
        if st == 8:
            S(f'v_add_f32_dpp v{x}, v{x}, v{x} row_ror:8 row_mask:0xf bank_mask:0xf')
        else:
            S(f'v_mov_b32 v{t}, v{x}')
            S(f'v_permlane{st}_swap_b32 v{t}, v{x}')
            S(f'v_add_f32 v{x}, v{x}, v{t}')


RT_BASE = 0x5100000


def mark(S, i):
    if OPT['rt']:
        S(f's_memrealtime s[{60+2*i}:{61+2*i}]')


def kernel_text(name, parts, vgpr, accum, sgpr=96):
    body = '\n'.join(parts)
    if OPT['rt']:
        kid = ['prep', 'conv', 'ffn', 'red'].index(name.split('_')[0])
        sgpr = 102
        tail = f"""  s_waitcnt vmcnt(0) lgkmcnt(0)
  s_memrealtime s[98:99]
  s_load_dwordx2 s[100:101], s[94:95], {A_WS}
  s_waitcnt lgkmcnt(0)
  s_add_u32 s100, s100, {RT_BASE + kid * 0x10000}
  s_addc_u32 s101, s101, 0
  s_mov_b64 exec, 1
  s_and_b32 s99, s16, 3
  s_cmp_ge_u32 s16, 4
  s_cselect_b32 s93, 0xf000, s93
  s_lshl_b32 s99, s99, 3
  s_add_u32 s93, s93, s99
  v_mov_b32 v0, s96
  v_mov_b32 v1, s98
  v_mov_b32 v2, s93
  global_store_dwordx2 v2, v[0:1], s[100:101]
  v_mov_b32 v4, s60
  v_mov_b32 v5, s62
  v_mov_b32 v6, s64
  v_mov_b32 v7, s66
  v_lshlrev_b32 v2, 1, v2
  s_add_u32 s100, s100, 0x40000 + {kid * 0x10000}
  s_addc_u32 s101, s101, 0
  global_store_dwordx4 v2, v[4:7], s[100:101]
  s_endpgm"""
        body = body.replace('  s_endpgm', tail)
        body = '  s_memrealtime s[96:97]\n  s_mov_b64 s[94:95], s[0:1]\n  s_lshl_b32 s93, s2, 5\n  s_waitcnt lgkmcnt(0)\n' + body
    if OPT['probe'] is not None and name != 'spin_kernel':
        kid = ['prep', 'conv', 'ffn', 'red'].index(name.split('_')[0])
        sgpr = 102
        cnt = [0]

        def tail(m):
            cnt[0] += 1
            return f"""  s_cmp_lg_u32 s93, 0
  s_cbranch_scc1 {name}_pr{cnt[0]}
  s_waitcnt vmcnt(0) lgkmcnt(0)
  s_memrealtime s[98:99]
  s_memtime s[88:89]
  s_load_dwordx2 s[100:101], s[94:95], {A_WS}
  s_waitcnt lgkmcnt(0)
  s_add_u32 s100, s100, 0x5300000
  s_addc_u32 s101, s101, 0
  s_mov_b64 exec, 1
  s_sub_u32 s88, s88, s97
  v_mov_b32 v0, s96
  v_mov_b32 v1, s98
  v_mov_b32 v2, s88
  v_mov_b32 v3, 0
  v_mov_b32 v4, {16 * kid}
  global_store_dwordx4 v4, v[0:3], s[100:101]
{name}_pr{cnt[0]}:
  s_endpgm"""
        import re
        body = re.sub('  s_endpgm', tail, body)
        body = ('  s_memrealtime s[96:97]\n  s_memtime s[98:99]\n  s_mov_b64 s[94:95], s[0:1]\n  v_readfirstlane_b32 s93, v0\n  s_waitcnt lgkmcnt(0)\n'
                '  s_mov_b32 s97, s98\n  s_or_b32 s93, s93, s2\n') + body
    if OPT['hd']:
        kid = ['prep', 'conv', 'ffn', 'red'].index(name.split('_')[0])
        sgpr = 102
        cnt = [0]

        def tail(m):
            cnt[0] += 1
            return f"""  s_and_b32 s99, s93, 15
  s_cmp_lg_u32 s99, 0
  s_cbranch_scc1 {name}_hd{cnt[0]}
  s_waitcnt vmcnt(0) lgkmcnt(0)
  s_memrealtime s[98:99]
  s_load_dwordx2 s[100:101], s[94:95], {A_DBG}
  s_waitcnt lgkmcnt(0)
  s_add_u32 s100, s100, {512 * ((2 if OPT['fuse'] else 3) - kid)}
  s_addc_u32 s101, s101, 0
  s_mov_b64 exec, 1
  s_not_b32 s96, s96
  v_mov_b32 v0, s96
  v_mov_b32 v1, s98
  v_mov_b32 v2, {8 * kid}
  global_atomic_umax v2, v0, s[100:101]
  global_atomic_umax v2, v1, s[100:101] offset:4
{name}_hd{cnt[0]}:
  s_endpgm"""
        import re
        body = re.sub('  s_endpgm', tail, body)
        body = '  s_memrealtime s[96:97]\n  s_mov_b64 s[94:95], s[0:1]\n  s_mov_b32 s93, s2\n  s_waitcnt lgkmcnt(0)\n' + body
    return f""".text
.p2align 8
{name}:
{body}
.section .rodata,"a"
.p2align 6
.amdhsa_kernel {name}
  .amdhsa_next_free_vgpr {vgpr}
  .amdhsa_next_free_sgpr {sgpr}
  .amdhsa_accum_offset {accum}
  .amdhsa_group_segment_fixed_size 0
  .amdhsa_kernarg_size 104
  .amdhsa_user_sgpr_count 2
  .amdhsa_user_sgpr_kernarg_segment_ptr 1
  .amdhsa_system_sgpr_workgroup_id_x 1
  .amdhsa_float_denorm_mode_32 3
.end_amdhsa_kernel
"""


K1_NWG = 448


def gen_prep():
    ld, st = OPT['ldflag'], OPT['st1']
    parts = []
    S = Stream('prep0')
    S(f's_load_dwordx4 s[4:7], s[0:1], {A_X}')
    S(f's_load_dwordx4 s[8:11], s[0:1], {A_V}')
    S(f's_load_dwordx2 s[14:15], s[0:1], {A_WS}')
    S('v_lshrrev_b32 v2, 6, v0')
    S('v_and_b32 v1, 7, v0')
    S('v_readfirstlane_b32 s16, v2')
    S('v_bfe_u32 v2, v0, 3, 3')
    S('s_mov_b32 s23, 0x20000')
    S('s_mov_b32 s27, 0x20000')
    S('s_mov_b32 s31, 0x20000')
    S('s_mov_b32 s35, 0x20000')
    S(f's_mov_b32 s22, {NB_X}')
    S(f's_mov_b32 s26, {NB_X}')
    S('s_cmp_ge_u32 s2, 288')
    S('s_cbranch_scc1 prep_ln', 'nocheck')

    udiv(S, 17, 2, 9, 18)
    S('s_mul_i32 s18, s17, 9')
    S('s_sub_u32 s18, s2, s18')
    S('s_lshl_b32 s17, s17, 1')
    S('s_add_u32 s17, s17, s16')
    S('s_lshl_b32 s17, s17, 5')
    S('v_lshl_add_u32 v3, v2, 2, s17')
    S('s_lshl_b32 s18, s18, 3')
    S('v_add_u32 v1, s18, v1')
    S('v_mul_u32_u24 v4, 1152, v3')
    S('v_lshl_add_u32 v4, v1, 4, v4')
    S('v_subrev_u32 v5, 3456, v4')
    S('v_lshlrev_b32 v6, 6, v1')
    S('s_waitcnt lgkmcnt(0)')
    mark(S, 0)
    S('s_mov_b32 s20, s6')
    S('s_mov_b32 s21, s7')
    S('s_mov_b32 s24, s8')
    S('s_mov_b32 s25, s9')
    KR, VR, SR = 12, 40, 56
    for d in range(3):
        S(f'buffer_load_dwordx4 v[{KR+4*d}:{KR+4*d+3}], v5, s[20:23], 0 offen offset:{1152*d} {ld}')
    for d in range(4):
        S(f'buffer_load_dwordx4 v[{KR+12+4*d}:{KR+15+4*d}], v4, s[20:23], 0 offen offset:{1152*d} {ld}')
    S('s_mov_b32 s28, s10')
    S('s_mov_b32 s29, s11')
    S(f's_mov_b32 s30, {D_*8}')
    for d in range(4):
        S(f'buffer_load_dwordx4 v[{SR+4*d}:{SR+4*d+3}], v6, s[28:31], 0 offen offset:{16*d}')
    for d in range(4):
        S(f'buffer_load_dwordx4 v[{VR+4*d}:{VR+4*d+3}], v4, s[24:27], 0 offen offset:{1152*d} {ld}')
    S(f's_add_u32 s32, s14, {WS_UR}')
    S('s_addc_u32 s33, s15, 0')
    S(f's_mov_b32 s34, {NB_X}')
    S('v_lshlrev_b32 v7, 15, v1')
    S('v_lshlrev_b32 v3, 1, v3')
    S('v_sub_u32 v7, v7, v3')
    S('v_add_u32 v7, 4088, v7')
    for c in range(1, 8):
        S(f's_mov_b32 s{35+c}, {4096*c}')
    mark(S, 1)
    KF, SF, VF, OF, PK = 72, 86, 94, 102, 110
    for p in range(4):
        for d in range(7):
            lo16(S, KF + 2 * d, KR + 4 * d + p)
            hi16(S, KF + 2 * d + 1, KR + 4 * d + p)
        for c in range(2):
            for h in range(2):
                lo16(S, SF + 2 * (2 * h) + c, SR + 4 * p + 2 * c + h)
                hi16(S, SF + 2 * (2 * h + 1) + c, SR + 4 * p + 2 * c + h)
        for j in range(4):
            for i in range(4):
                o, kf, sh = OF + 2 * i, KF + 2 * (i + 3 - j), SF + 2 * j
                if j == 0:
                    S(f'v_pk_mul_f32 v[{o}:{o+1}], v[{kf}:{kf+1}], v[{sh}:{sh+1}]')
                else:
                    S(f'v_pk_fma_f32 v[{o}:{o+1}], v[{kf}:{kf+1}], v[{sh}:{sh+1}], v[{o}:{o+1}]')
        for i in range(4):
            lo16(S, VF + 2 * i, VR + 4 * i + p)
            hi16(S, VF + 2 * i + 1, VR + 4 * i + p)
        for i in range(4):
            o = OF + 2 * i
            S(f'v_pk_mul_f32 v[{o}:{o+1}], v[{o}:{o+1}], v[{VF+2*i}:{VF+2*i+1}]')
        for c in range(2):
            r = PK + 4 * p + 2 * c
            S(f'v_cvt_pk_bf16_f32 v{r}, v{OF+6+c}, v{OF+4+c}')
            S(f'v_cvt_pk_bf16_f32 v{r+1}, v{OF+2+c}, v{OF+c}')
            ch = 2 * p + c
            S(f'buffer_store_dwordx2 v[{r}:{r+1}], v7, s[32:35], {"0" if ch == 0 else f"s{35+ch}"} offen {st}')
        if p == 0:
            mark(S, 2)
    mark(S, 3)
    S('s_endpgm')
    parts.append(S.finalize())

    S = Stream('prep_ln')
    S('prep_ln:')
    S('s_cmp_ge_u32 s2, 416')
    S('s_cbranch_scc1 prep_pf')
    S('s_sub_u32 s3, s2, 288')
    S('s_lshl_b32 s3, s3, 1')
    S('s_add_u32 s3, s3, s16')
    S('s_lshl_b32 s3, s3, 3')
    S('v_add_u32 v2, s3, v2')
    S('v_mul_u32_u24 v4, 1152, v2')
    S('v_lshl_add_u32 v4, v1, 4, v4')
    S('s_waitcnt lgkmcnt(0)')
    mark(S, 0)
    S('s_mov_b32 s20, s4')
    S('s_mov_b32 s21, s5')
    for i in range(9):
        S(f'buffer_load_dwordx4 v[{12+4*i}:{15+4*i}], v4, s[20:23], 0 offen offset:{128*i} {ld}')
    S(f's_add_u32 s24, s14, {WS_XP}')
    S('s_addc_u32 s25, s15, 0')
    S(f's_add_u32 s28, s14, {WS_ST}')
    S('s_addc_u32 s29, s15, 0')
    S(f's_mov_b32 s30, {S_*8}')
    S('v_lshlrev_b32 v2, 3, v2')
    S('v_lshl_add_u32 v3, v1, 15, v2')
    S('v_add_u32 v5, 16384, v3')
    S('v_mov_b32 v10, 0x3f803f80')
    for i in range(4):
        S(f'v_mov_b32 v{6+i}, 0')
    mark(S, 1)
    for i in range(9):
        S(f's_mov_b32 s3, {i*262144}')
        S(f'buffer_store_dwordx2 v[{12+4*i}:{13+4*i}], v3, s[24:27], s3 offen {st}')
        S(f'buffer_store_dwordx2 v[{14+4*i}:{15+4*i}], v5, s[24:27], s3 offen {st}')
        for d in range(4):
            r = 12 + 4 * i + d
            S(f'v_dot2_f32_bf16 v{6+(d&1)}, v{r}, v10, v{6+(d&1)}')
            S(f'v_dot2_f32_bf16 v{8+(d&1)}, v{r}, v{r}, v{8+(d&1)}')
        if i == 0:
            mark(S, 2)
    S('s_nop 2')
    S('v_add_f32 v6, v6, v7')
    S('v_add_f32 v8, v8, v9')
    for dpp in ('quad_perm:[1,0,3,2]', 'quad_perm:[2,3,0,1]', 'row_half_mirror'):
        S(f'v_add_f32_dpp v6, v6, v6 {dpp} row_mask:0xf bank_mask:0xf')
        S(f'v_add_f32_dpp v8, v8, v8 {dpp} row_mask:0xf bank_mask:0xf')
    S(f'v_mul_f32 v7, {-1.0/576!r}, v6')
    S('v_mov_b32 v6, 0x3727c5ac')
    S(f'v_fmac_f32 v6, {1.0/576!r}, v8')
    S('v_fma_f32 v6, -v7, v7, v6')
    S('v_max_f32 v6, 0x3727c5ac, v6')
    S('v_rsq_f32 v6, v6')
    S('v_mul_f32 v7, v7, v6')
    S(f'buffer_store_dwordx2 v[6:7], v2, s[28:31], 0 offen {st}')
    mark(S, 3)
    S('s_endpgm')
    parts.append(S.finalize())

    S = Stream('prep_pf')
    S('prep_pf:')
    S(f's_cmp_ge_u32 s2, {K1_NWG}')
    S('s_cbranch_scc1 prep_end')
    S('s_sub_u32 s3, s2, 416')
    S('v_lshlrev_b32 v2, 4, v0')
    for i in range(4):
        S(f'v_mov_b32 v{8+i}, 0')
    S('s_lshl_b32 s17, s3, 12')
    S('s_lshr_b32 s18, s3, 3')
    S(f's_mul_i32 s18, s18, {10*2048}')
    S('s_getpc_b64 s[20:21]')
    parts.append(S.finalize())
    parts.append('prep_pc:\n  s_add_u32 s20, s20, conv_kernel-prep_pc\n  s_addc_u32 s21, s21, 0\n'
                 '  s_mov_b32 s22, code_end-conv_kernel')
    S = Stream('prep_pf2')
    for i in range(10):
        S(f's_add_u32 s3, s18, {i*2048}')
        S(f'buffer_load_dwordx4 v[{12+4*i}:{15+4*i}], v2, s[20:23], s3 offen')
    S('s_waitcnt lgkmcnt(0)')
    S(f's_add_u32 s24, s14, {WS_CS}')
    S('s_addc_u32 s25, s15, 0')
    S('s_mov_b32 s26, 0x20000')
    S(f'buffer_store_dwordx4 v[8:11], v2, s[24:27], s17 offen {st}')
    S(f'buffer_store_dwordx4 v[8:11], v2, s[24:27], s17 offen offset:2048 {st}')
    S('prep_end:', 'nocheck')
    S('s_endpgm')
    parts.append(S.finalize())
    return kernel_text('prep_kernel', parts, 128, 128)


CV_CH = 12928
CV_Y = 4 * CV_CH
CV_LDS = CV_Y + 32768


def hop_call(name, wave_sgpr):
    if not OPT['hop']:
        return ''
    t = f'  s_mov_b64 exec, 0\n  s_and_b32 s92, s{wave_sgpr}, 3\n'
    for w in range(3):
        t += f'  s_cmp_lg_u32 s92, {w}\n  s_cbranch_scc1 {name}_n{w}\n  s_call_b64 s[90:91], ffn_hopq{w}\n  s_branch {name}_ret\n{name}_n{w}:\n'
    t += f'  s_call_b64 s[90:91], ffn_hopq3\n{name}_ret:\n  s_mov_b64 exec, -1'
    return t


def gen_conv():
    pf, st = OPT['pfflag'], OPT['stflag']
    parts = []
    S = Stream('conv0')
    S(f's_load_dwordx4 s[4:7], s[0:1], {A_SK}')
    S(f's_load_dwordx2 s[14:15], s[0:1], {A_WS}')
    S(f's_load_dwordx4 s[8:11], s[0:1], {A_W1}')
    S(f's_load_dwordx2 s[12:13], s[0:1], {A_W2}')
    S('v_lshrrev_b32 v2, 6, v0')
    S('v_and_b32 v1, 63, v0')
    S('v_readfirstlane_b32 s16, v2')
    S('s_cmp_ge_u32 s2, 144')
    S('s_cbranch_scc1 conv_cs', 'nocheck')
    S('s_cmp_ge_u32 s16, 4')
    S('s_cbranch_scc1 conv_help', 'nocheck')
    S('s_lshl_b32 s3, s2, 2')
    S('s_add_u32 s3, s3, s16')
    S('s_lshl_b32 s17, s3, 12')
    S(f's_mul_i32 s18, s16, {CV_CH}')
    S('v_lshlrev_b32 v2, 4, v1')
    S('v_add_u32 v3, 2, v2')
    S('s_mov_b32 m0, s18')
    S('s_waitcnt lgkmcnt(0)')
    mark(S, 0)
    srd(S, 20, 14, WS_UR, NB_X)
    for i in range(4):
        S(f'buffer_load_dwordx4 v2, s[20:23], s17 offen offset:{1024*i} lds', 'dma')
    srd(S, 24, 4, 0, NB_X)
    S(f's_add_u32 m0, s18, {4608+32}')
    srd(S, 28, 6, 0, D_ * 2)
    S('v_mov_b32 v4, 0')
    S('s_lshl_b32 s19, s3, 1')
    S('buffer_load_ushort v5, v4, s[24:27], s17 offen')
    S('buffer_load_ushort v6, v4, s[28:31], s19 offen')
    for i in range(4):
        S(f'buffer_load_dwordx4 v2, s[24:27], s17 offen offset:{1024*i} lds', 'dma')
    S(f's_add_u32 m0, s18, {4608+4160+32}')
    S('v_mov_b32 v8, 0')
    for i in range(4):
        S(f'buffer_load_dwordx4 v3, s[24:27], s17 offen offset:{1024*i} lds', 'dma')
    srd(S, 32, 14, WS_XP, NB_X)
    srd(S, 36, 14, WS_H, NB_X)
    srd(S, 44, 14, WS_ST, S_ * 8)
    S('v_mov_b32 v9, 0')
    S('v_lshl_add_u32 v10, v1, 3, s18')
    S('ds_write_b64 v10, v[8:9] offset:4096')
    S('v_and_b32 v11, 15, v1')
    S('v_lshrrev_b32 v12, 4, v1')
    S('v_and_b32 v13, 1, v1')
    S('v_cmp_eq_u32 vcc, 1, v13')
    S('v_mov_b32 v13, 4160')
    S('v_cndmask_b32 v13, v13, 2, vcc')
    S('v_lshl_add_u32 v13, v11, 1, v13')
    S('v_lshl_add_u32 v13, v12, 4, v13')
    S(f's_add_u32 s40, s18, 4608')
    S('v_add_u32 v16, s40, v13')
    for qp in range(1, 4):
        S(f'v_add_u32 v{16+qp}, {1024*qp}, v16')
    S('v_lshlrev_b32 v13, 5, v11')
    S('v_sub_u32 v13, 480, v13')
    S('v_lshl_add_u32 v13, v12, 4, v13')
    S('v_add_u32 v15, s18, v13')
    S('v_lshlrev_b32 v7, 6, v11')
    S('v_lshl_add_u32 v7, v12, 4, v7')
    S('s_lshl_b32 s41, s16, 13')
    S(f's_add_u32 s41, s41, {CV_Y}')
    S('v_add_u32 v7, s41, v7')
    S('v_lshlrev_b32 v10, 3, v0')
    S(f'v_add_u32 v10, {CV_Y}, v10')
    S('v_lshlrev_b32 v4, 4, v0')
    S('s_lshl_b32 s19, s2, 14')
    S('v_sub_u32 v13, 15, v11')
    S('v_and_b32 v14, 1, v13')
    S('v_lshlrev_b32 v14, 4, v14')
    S('v_lshrrev_b32 v13, 1, v13')
    S('v_lshlrev_b32 v12, 2, v12')
    S('v_sub_u32 v12, v13, v12')
    S('v_lshlrev_b32 v6, v14, v6')
    for dw in range(4):
        S(f'v_cmp_eq_u32 vcc, {dw}, v12')
        S(f'v_cndmask_b32 v{176+dw}, 0, v6, vcc')
    S('v_and_b32 v13, 7, v1')
    S('v_lshlrev_b32 v13, 2, v13')
    S('v_bfe_u32 v14, v1, 3, 1')
    S('v_mul_u32_u24 v14, 4160, v14')
    S('v_add3_u32 v13, v13, v14, s40')
    S('v_lshlrev_b32 v5, 16, v5')
    S('v_cmp_eq_u32 vcc, 15, v11')
    S('v_cndmask_b32 v14, 0, v5, vcc')
    S('ds_write_b32 v13, v14')
    S.wait_tag('dma')
    S('s_waitcnt lgkmcnt(0)')
    mark(S, 1)
    ACC, AF, BF, XQ = 20, [52, 84], [116, 212], 180

    def reads(r):
        a, b = AF[r & 1], BF[r & 1]
        L = []
        order = [('A', 0), ('B', 0)]
        for k in range(1, 8):
            order += [('B', k), ('A', k)]
        for kind, k in order:
            if kind == 'A':
                o = (k & 1) * 128 + 16 * r
                L.append(f'ds_read2_b32 v[{a+4*k}:{a+4*k+1}], v{16+(k>>1)} offset0:{o} offset1:{o+1}')
                L.append(f'ds_read2_b32 v[{a+4*k+2}:{a+4*k+3}], v{16+(k>>1)} offset0:{o+2} offset1:{o+3}')
            else:
                L.append(f'ds_read_b128 v[{b+4*k}:{b+4*k+3}], v15 offset:{512*(7-k)+64*r}')
        return L

    for x in reads(0):
        S(x)
    first = [True] * 8
    for r in range(8):
        a, b = AF[r & 1], BF[r & 1]
        pairs = sorted([(Q, m) for Q in range(8) for m in range(8) if Q + m <= 7], key=lambda p: (max(p), p[0] + p[1]))
        mf = []
        for Q, m in pairs:
            n = Q + m
            c = '0' if first[n] else f'v[{ACC+4*n}:{ACC+4*n+3}]'
            first[n] = False
            mf.append(f'v_mfma_f32_16x16x32_bf16 v[{ACC+4*n}:{ACC+4*n+3}], v[{a+4*Q}:{a+4*Q+3}], v[{b+4*m}:{b+4*m+3}], {c}')
        if r == 0:
            for n in range(8):
                mf.append(f'v_mfma_f32_16x16x32_bf16 v[{ACC+4*n}:{ACC+4*n+3}], v[176:179], v[{b+4*n}:{b+4*n+3}], v[{ACC+4*n}:{ACC+4*n+3}]')
        nxt = reads(r + 1) if r < 7 else []
        if r:
            S.wait_regs([f'v[{a}:{a+31}]', f'v[{b}:{b+31}]'])
        lag = 8 if r == 0 else 0
        for i, m in enumerate(mf):
            S(m)
            if i >= lag and nxt:
                S(nxt.pop(0))
            if 1 <= r <= 4 and i == 28:
                S(f's_add_u32 s40, s19, {(r-1)*4096}')
                S(f'buffer_load_dwordx4 v[{XQ+8*(r-1)}:{XQ+8*(r-1)+3}], v4, s[32:35], s40 offen')
            if 1 <= r <= 4 and i == 32:
                S(f's_mov_b32 s40, {(r-1)*4096}')
                S(f'buffer_load_dwordx4 v[{XQ+8*(r-1)+4}:{XQ+8*(r-1)+7}], v4, s[44:47], s40 offen')
        assert not nxt
    mark(S, 2)
    for n in range(8):
        S(f'ds_write_b128 v7, v[{ACC+4*n}:{ACC+4*n+3}] offset:{1024*n}')
    T = 116
    for it in range(4):
        for tk in range(2):
            for h in range(2):
                x, t = XQ + 8 * it + 2 * tk + h, T + 16 * it + 8 * tk + 4 * h
                lo16(S, t, x)
                hi16(S, t + 1, x)
                S(f'v_fma_f32 v{t+2}, v{t}, v{XQ+8*it+4+2*tk}, v{XQ+8*it+5+2*tk}')
                S(f'v_fma_f32 v{t+3}, v{t+1}, v{XQ+8*it+4+2*tk}, v{XQ+8*it+5+2*tk}')
    S('s_waitcnt lgkmcnt(0)')
    S('s_barrier')
    Y = 52
    for it in range(4):
        for c in range(4):
            S(f'ds_read_b64 v[{Y+8*it+2*c}:{Y+8*it+2*c+1}], v10 offset:{c*8192+2048*it}')
    for it in range(4):
        for tk in range(2):
            for h in range(2):
                t = T + 16 * it + 8 * tk + 4 * h
                S(f'v_fmac_f32 v{t}, v{t+2}, v{Y+8*it+2*(2*h)+tk}')
                S(f'v_fmac_f32 v{t+1}, v{t+3}, v{Y+8*it+2*(2*h+1)+tk}')
                S(f'v_cvt_pk_bf16_f32 v{ACC+4*it+2*tk+h}, v{t}, v{t+1}')
        S(f's_add_u32 s40, s19, {it*4096}')
        S(f'buffer_store_dwordx4 v[{ACC+4*it}:{ACC+4*it+3}], v4, s[36:39], s40 offen {st}')
    mark(S, 3)
    S('s_endpgm')
    parts.append(S.finalize())

    parts.append('conv_help:\n' + hop_call('conv_h1', 16))
    S = Stream('conv_help')
    S('s_waitcnt lgkmcnt(0)')
    srd(S, 20, 12, 0, NB_W)
    S('s_and_b32 s17, s2, 7')
    S('s_mul_i32 s17, s17, 663552')
    S('s_lshr_b32 s18, s2, 3')
    S('s_mul_i32 s18, s18, 36864')
    S('s_add_u32 s18, s18, s17')
    S('v_and_b32 v2, 255, v0')
    S('v_lshlrev_b32 v2, 4, v2')
    for i in range(9):
        S(f's_add_u32 s3, s18, {i*4096}')
        S(f'buffer_load_dwordx4 v[{8+4*i}:{11+4*i}], v2, s[20:23], s3 offen {pf}')
    S('s_endpgm')
    parts.append(S.finalize())

    S = Stream('conv_cs')
    S('conv_cs:')
    S('s_cmp_ge_u32 s2, 240')
    S('s_cbranch_scc1 conv_hop')
    S('s_sub_u32 s3, s2, 144')
    S('s_and_b32 s17, s3, 7')
    S('s_lshr_b32 s18, s3, 3')
    S('s_mul_i32 s17, s17, 1152')
    S('s_lshr_b32 s19, s18, 2')
    S('s_mul_i32 s19, s19, 384')
    S('s_add_u32 s17, s17, s19')
    S('s_and_b32 s19, s18, 1')
    S('s_lshl_b32 s19, s19, 3')
    S('s_add_u32 s19, s19, s16')
    S(f's_mul_i32 s19, s19, {36*9216}')
    S('s_add_u32 s19, s19, s17')
    S('v_cmp_le_u32 vcc, 24, v1')
    S(f'v_cndmask_b32 v2, 0, 1, vcc')
    S(f'v_mul_u32_u24 v2, {9216-384}, v2')
    S('v_lshl_add_u32 v2, v1, 4, v2')
    S('v_bfrev_b32 v3, 1')
    S('v_cmp_le_u32 vcc, 48, v1')
    S('v_cndmask_b32 v2, v2, v3, vcc')
    S('s_bitcmp1_b32 s18, 1')
    S('s_waitcnt lgkmcnt(0)')
    S('s_cselect_b32 s20, s10, s8')
    S('s_cselect_b32 s21, s11, s9')
    S(f's_cselect_b32 s24, {F_*4}, 0')
    S(f's_mov_b32 s22, {NB_W}')
    S('s_mov_b32 s23, 0x20000')
    mark(S, 0)
    parts.append(S.finalize())
    parts.append(hop_call('conv_h2', 16))
    S = Stream('conv_cs2')
    for i in range(18):
        S(f's_add_u32 s3, s19, {i*2*9216}')
        S(f'buffer_load_dwordx4 v[{32+4*i}:{35+4*i}], v2, s[20:23], s3 offen {pf}')
    mark(S, 1)
    srd(S, 28, 14, WS_CS, 2 * F_ * 4)
    for i in range(18):
        r = 32 + 4 * i
        for dw in range(4):
            if i == 0:
                lo16(S, 8 + 2 * dw, r + dw)
                hi16(S, 9 + 2 * dw, r + dw)
            else:
                t = 16 + 2 * dw
                lo16(S, t, r + dw)
                hi16(S, t + 1, r + dw)
                S(f'v_pk_add_f32 v[{8+2*dw}:{9+2*dw}], v[{8+2*dw}:{9+2*dw}], v[{t}:{t+1}]')
    mark(S, 2)
    S('v_lshlrev_b32 v4, 5, v0')
    S('ds_write_b128 v4, v[8:11]')
    S('ds_write_b128 v4, v[12:15] offset:16')
    S('v_lshlrev_b32 v5, 2, v0')
    S('s_waitcnt lgkmcnt(0)')
    S('s_barrier')
    S('s_cmp_ge_u32 s16, 3')
    S('s_cbranch_scc1 conv_end')
    for w in range(16):
        S(f'ds_read_b32 v{8+w}, v5 offset:{2048*(w>>1)+768*(w&1)}')
    for stp in (8, 4, 2, 1):
        for w in range(stp):
            S(f'v_add_f32 v{8+w}, v{8+w}, v{8+w+stp}')
    S('s_lshl_b32 s17, s17, 1')
    S('s_add_u32 s17, s17, s24')
    S('buffer_atomic_add_f32 v8, v5, s[28:31], s17 offen')
    mark(S, 3)
    S('s_endpgm')
    parts.append(S.finalize())
    parts.append('conv_hop:\n  s_cmp_ge_u32 s2, 256\n  s_cbranch_scc1 conv_end\n  s_cmp_ge_u32 s16, 4\n  s_cbranch_scc1 conv_end\n' +
                 hop_call('conv_h3', 16) + '\nconv_end:\n  s_endpgm')
    return kernel_text('conv_kernel', parts, 248, 248)


def gen_red():
    S = Stream('red')
    S('s_cmp_ge_u32 s2, 576')
    S('s_cbranch_scc1 red_end')
    S(f's_load_dwordx2 s[4:5], s[0:1], {A_OUT}')
    S(f's_load_dwordx2 s[14:15], s[0:1], {A_WS}')
    S('v_lshrrev_b32 v2, 6, v0')
    S('v_and_b32 v1, 63, v0')
    S('v_readfirstlane_b32 s16, v2')
    S('s_lshl_b32 s3, s2, 2')
    S('s_add_u32 s3, s3, s16')
    S('s_waitcnt lgkmcnt(0)')
    srd(S, 20, 14, WS_PART, 8 * NB_X)
    srd(S, 24, 14, WS_H, NB_X)
    srd(S, 28, 14, WS_RS, S_ * 4)
    srd(S, 32, 4, 0, NB_X)
    S('s_lshl_b32 s17, s3, 10')
    S('v_lshlrev_b32 v2, 4, v1')
    for p in range(8):
        S(f's_add_u32 s18, s17, {p*NB_X}')
        S(f'buffer_load_dwordx4 v[{16+4*p}:{19+4*p}], v2, s[20:23], s18 offen')
    udiv(S, 17, 3, 9, 18)
    S('s_mul_i32 s18, s17, 9')
    S('s_sub_u32 s18, s3, s18')
    S('s_lshr_b32 s19, s17, 4')
    S('s_lshl_b32 s19, s19, 2')
    S('s_bfe_u32 s36, s17, 0x20001')
    S('s_add_u32 s19, s19, s36')
    S('s_lshl_b32 s19, s19, 5')
    S('s_and_b32 s36, s17, 1')
    S('s_add_u32 s19, s19, s36')
    S('s_bfe_u32 s36, s17, 0x10003')
    S('s_lshl_b32 s37, s18, 5')
    S('s_mul_i32 s38, s36, 320')
    S('s_add_u32 s37, s37, s38')
    S('s_lshl_b32 s38, s36, 5')
    S('s_add_u32 s38, s38, 256')
    S('s_cmp_lt_u32 s18, 8')
    S('s_cselect_b32 s37, s37, s38')
    S('v_and_b32 v3, 15, v1')
    S('v_lshl_add_u32 v3, v3, 1, s19')
    S('v_lshrrev_b32 v4, 4, v1')
    S('v_lshlrev_b32 v5, 14, v4')
    S('v_lshl_add_u32 v5, v3, 3, v5')
    S('s_lshl_b32 s38, s37, 12')
    S('s_add_u32 s39, s38, 65536')
    S('buffer_load_dwordx2 v[8:9], v5, s[24:27], s38 offen')
    S('buffer_load_dwordx2 v[10:11], v5, s[24:27], s39 offen')
    S('v_lshlrev_b32 v6, 2, v3')
    S('buffer_load_dword v7, v6, s[28:31], 0 offen')
    S('v_mul_u32_u24 v3, 1152, v3')
    S('v_and_b32 v6, 1, v4')
    S('v_lshl_add_u32 v3, v6, 5, v3')
    S('v_lshrrev_b32 v6, 1, v4')
    S('v_lshl_add_u32 v3, v6, 4, v3')
    S('s_lshl_b32 s37, s37, 1')
    A = 48
    for p in range(8):
        for dw in range(4):
            if p == 0:
                lo16(S, A + 2 * dw, 16 + dw)
                hi16(S, A + 2 * dw + 1, 16 + dw)
            else:
                t = 56 + 2 * dw
                lo16(S, t, 16 + 4 * p + dw)
                hi16(S, t + 1, 16 + 4 * p + dw)
                S(f'v_pk_add_f32 v[{A+2*dw}:{A+2*dw+1}], v[{A+2*dw}:{A+2*dw+1}], v[{t}:{t+1}]')
    for dw in range(4):
        t = 56 + 2 * dw
        lo16(S, t, 8 + dw)
        hi16(S, t + 1, 8 + dw)
        S(f'v_fmac_f32 v{t}, v7, v{A+2*dw}')
        S(f'v_fmac_f32 v{t+1}, v7, v{A+2*dw+1}')
        S(f'v_cvt_pk_bf16_f32 v{12+dw}, v{t}, v{t+1}')
    S('v_permlane16_swap_b32 v12, v14')
    S('v_permlane16_swap_b32 v13, v15')
    S('buffer_store_dwordx4 v[12:15], v3, s[32:35], s37 offen')
    S('red_end:')
    S('s_endpgm')
    return kernel_text('red_kernel', [S.finalize()], 64, 64)


def gen_spin():
    a, b, mul = OPT['probe']
    t = f"""  s_cmp_lg_u32 s2, 0
  s_cbranch_scc1 spin_end
  s_load_dwordx2 s[4:5], s[0:1], {A_WS}
  s_waitcnt lgkmcnt(0)
  s_add_u32 s4, s4, 0x5300000
  s_addc_u32 s5, s5, 0
  s_load_dwordx16 s[16:31], s[4:5], 0
  s_memrealtime s[8:9]
  s_waitcnt lgkmcnt(0)
  s_sub_u32 s10, s{16+a}, s{16+b}
  s_mul_i32 s10, s10, {mul}
  s_lshr_b32 s10, s10, 8
  s_min_u32 s10, s10, 100000
spin_l:
  s_memrealtime s[12:13]
  s_waitcnt lgkmcnt(0)
  s_sub_u32 s12, s12, s8
  s_cmp_lt_u32 s12, s10
  s_cbranch_scc1 spin_l
spin_end:
  s_endpgm"""
    return kernel_text('spin_kernel', [t], 8, 8)


def unpack_hhx(t):
    import torch
    out = torch.zeros(2048, 4608)
    for wg in range(256):
        x, p, tile = wg & 7, (wg >> 3) & 1, wg >> 4
        fo = [32 * i for i in range(9)] if p == 0 else [32 + 32 * i for i in range(8)] + [0]
        for s in range(9):
            f0 = 288 * (2 * x + p) + fo[s]
            a = t[wg, :, s].reshape(4, 2, 4, 16, 2, 4)
            a = a.permute(0, 3, 1, 4, 2, 5).reshape(128, 32)
            out[128 * tile:128 * tile + 128, f0:f0 + 32] = a
    return out


def build(ffn_text, ffn_lds):
    head = f"""; H3 long-convolution block + SwiGLU FFN with pre-LayerNorm, four launches (generated by my gen.py)
; @launch kernel=prep_kernel grid=({K1_NWG},1,1) block=(128,1,1) lds=0
; @launch kernel=conv_kernel grid=(256,1,1) block=(512,1,1) lds={CV_LDS}
; @launch kernel=ffn_kernel grid=(256,1,1) block=(256,1,1) lds={ffn_lds}
{'' if OPT['fuse'] else '; @launch kernel=red_kernel grid=(576,1,1) block=(256,1,1) lds=0'}
{'' if OPT['probe'] is None else '; @launch kernel=spin_kernel grid=(1,1,1) block=(64,1,1) lds=0'}
.amdgcn_target "amdgcn-amd-amdhsa--gfx950"
"""
    return head + gen_prep() + gen_conv() + ffn_text + ('' if OPT['fuse'] else gen_red()) + ('' if OPT['probe'] is None else gen_spin()) + '.text\ncode_end:\n  s_endpgm\n'


if __name__ == '__main__':
    import gen as _g
    from gen_ffn import gen_ffn
    P = {}
    for a in sys.argv[2:]:
        k, v = a.split('=')
        v = eval(v)
        if k in OPT:
            OPT[k] = v
            _g.OPT[k] = v
        else:
            P[k] = v
    txt, lds = gen_ffn(P)
    out = sys.argv[1] if len(sys.argv) > 1 else f'cdna_kernels/{NAME}.s'
    open(out, 'w').write(build(txt, lds))
    print('wrote', out)
```
